```python
import torch

def _softmax(x, axis=-1):
    return torch.softmax(x, dim=axis)

def _gelu(x):
    return torch.nn.functional.gelu(x, approximate='tanh')

def _silu(x):
    return torch.nn.functional.silu(x)

def _sigmoid(x):
    return torch.sigmoid(x)

def _layernorm(x, axis=-1, eps=1e-05):
    m = x.mean(dim=axis, keepdim=True)
    v = x.var(dim=axis, keepdim=True, unbiased=False)
    return (x - m) / torch.sqrt(v + eps)

def _scatter_add(tgt, idx, src, axis=0):
    return tgt.clone().index_add_(axis, idx, src)

def _segment_sum(src, seg, n):
    out = torch.zeros((n,) + src.shape[1:], dtype=src.dtype)
    return out.index_add_(0, seg, src)

def _pad(x, pw):
    flat = tuple((v for pair in reversed(pw) for v in pair))
    return torch.nn.functional.pad(x, flat)
kernel_name = 'adaLN_cond__sliding_block_cached__mixer_gmlp__prompt'

def setup_inputs():

    _w = lambda a: (lambda t: t.to(torch.bfloat16) if t.is_floating_point() else t)(torch.as_tensor(a))

    def _A_setup():
        B, Sq, D = (1, 2048, 448)
        Hq, Hkv, Sk, Dh = (16, 8, 2048, 256)
        assert Hq % Hkv == 0, (Hq, Hkv)
        return {'x': _w((lambda *s: torch.randn(*s, dtype=torch.bfloat16) * 0.1)(B, Sq, D)), 'k_cache': _w((lambda *s: torch.randn(*s, dtype=torch.bfloat16) * 0.8)(B, Hkv, Sk, Dh)), 'v_cache': _w((lambda *s: torch.randn(*s, dtype=torch.bfloat16) * 1.6)(B, Hkv, Sk, Dh)), 'wq': _w((lambda *s: torch.randn(*s, dtype=torch.bfloat16) * 0.8)(D, Hq * Dh) * D ** (-0.5)), 'wo': _w((lambda *s: torch.randn(*s, dtype=torch.bfloat16) * 1.6)(Hq * Dh, D) * (Hq * Dh) ** (-0.5))}
    _A_in = _A_setup()

    def _B_setup():
        B, S, D, F = (1, 2048, 448, 1792)
        Fh = F // 2
        return {'x': _w((lambda *s: torch.randn(*s, dtype=torch.bfloat16) * 0.1)(B, S, D)), 'w_in': _w((lambda *s: torch.randn(*s, dtype=torch.bfloat16) * 1.6)(D, 2 * Fh)), 'w_sp': _w(0.01 * (lambda *s: torch.randn(*s, dtype=torch.bfloat16) * 1.6)(S, S)), 'b_sp': _w(1.0 + 0.01 * (lambda *s: torch.randn(*s, dtype=torch.bfloat16) * 0.2)(S)), 'w_out': _w((lambda *s: torch.randn(*s, dtype=torch.bfloat16) * 0.2)(Fh, D))}
    _B_in = _B_setup()
    return {'A_x': _A_in['x'], 'A_k_cache': _A_in['k_cache'], 'A_v_cache': _A_in['v_cache'], 'A_wq': _A_in['wq'], 'A_wo': _A_in['wo'], 'B_x': _B_in['x'], 'B_w_in': _B_in['w_in'], 'B_w_sp': _B_in['w_sp'], 'B_b_sp': _B_in['b_sp'], 'B_w_out': _B_in['w_out'], 'c': _w((lambda *s: torch.randn(*s, dtype=torch.bfloat16) * 0.8)(1, 448) * 8.0), 'w_mod': _w((lambda *s: torch.randn(*s, dtype=torch.bfloat16) * 0.8)(448, 6 * 448) * 448 ** (-0.5) * 8.0)}

def reference(A_x, A_k_cache, A_v_cache, A_wq, A_wo, B_x, B_w_in, B_w_sp, B_b_sp, B_w_out, c, w_mod):

    def _A_ref(x, k_cache, v_cache, wq, wo):
        B, Sq, D = x.shape
        Hq, Dh = (16, 256)
        Hkv, Sk = (k_cache.shape[1], k_cache.shape[2])
        W = min(4096, max(256, Sk // 4))
        rep = Hq // Hkv
        q = (lambda x, *d: x.permute(*d))((x @ wq).reshape(B, Sq, Hq, Dh), 0, 2, 1, 3)
        k = (lambda x, n, axis: torch.repeat_interleave(x, n, dim=axis))(k_cache[:, :, Sk - W:, :], rep, axis=1)
        v = (lambda x, n, axis: torch.repeat_interleave(x, n, dim=axis))(v_cache[:, :, Sk - W:, :], rep, axis=1)
        scores = torch.einsum('bhqd,bhkd->bhqk', q, k) * Dh ** (-0.5)
        p = _softmax(scores, axis=-1)
        o = torch.einsum('bhqk,bhkd->bhqd', p, v)
        return (lambda x, *d: x.permute(*d))(o, 0, 2, 1, 3).reshape(B, Sq, Hq * Dh) @ wo

    def _B_ref(x, w_in, w_sp, b_sp, w_out):
        B, S, D = x.shape
        F = w_in.shape[-1]
        Fh = F // 2
        z = _gelu(torch.einsum('bsd,df->bsf', x, w_in))
        z1 = z[..., :Fh].clone()
        z2 = _layernorm(z[..., Fh:], axis=-1)
        g = torch.einsum('ts,bsf->btf', w_sp, z2) + b_sp[None, :, None]
        return torch.einsum('bsf,fd->bsd', z1 * g, w_out)
    x = A_x
    mod = (_silu(c) @ w_mod).reshape(c.shape[0], 6, 1, -1)
    sa, ca, ga, sb, cb, gb = (mod[:, 0].clone(), mod[:, 1].clone(), mod[:, 2].clone(), mod[:, 3].clone(), mod[:, 4].clone(), mod[:, 5].clone())
    h = _layernorm(x, axis=-1) * (1 + ca) + sa
    x = x + ga * _A_ref(h, A_k_cache, A_v_cache, A_wq, A_wo)
    h = _layernorm(x, axis=-1) * (1 + cb) + sb
    x = x + gb * _B_ref(h, B_w_in, B_w_sp, B_b_sp, B_w_out)
    return x
```

```python
import re, sys

def v(a, n=1): return f"v{a}" if n == 1 else f"v[{a}:{a+n-1}]"
def a(a_, n=1): return f"a{a_}" if n == 1 else f"a[{a_}:{a_+n-1}]"
def s(a_, n=1): return f"s{a_}" if n == 1 else f"s[{a_}:{a_+n-1}]"
def r(x, n=1):
    if x >= 256:
        return a(x-256, n)
    assert x + n <= 256, (x, n)
    return v(x, n)

_reg = re.compile(r'^(-|abs\(|-abs\(|\|)?([vas])(\d+|\[(\d+):(\d+)\])\)?\|?$')
def regs_of(tok):
    tok = tok.strip()
    if tok in ('vcc',): return [('s', 'vcc_lo'), ('s', 'vcc_hi')]
    if tok in ('vcc_lo', 'vcc_hi', 'm0', 'exec_lo', 'exec_hi'): return [('s', tok)]
    if tok == 'exec': return [('s', 'exec_lo'), ('s', 'exec_hi')]
    m = _reg.match(tok)
    if not m: return []
    c = m.group(2)
    if m.group(4) is not None:
        return [(c, i) for i in range(int(m.group(4)), int(m.group(5))+1)]
    return [(c, int(m.group(3)))]

TRANS = ('v_exp_f32', 'v_log_f32', 'v_rcp_f32', 'v_rsq_f32', 'v_sqrt_f32', 'v_sin_f32', 'v_cos_f32', 'v_rcp_iflag_f32')
DPPW = ('quad_perm', 'row_shl', 'row_shr', 'row_ror', 'wave_', 'row_mirror', 'row_half_mirror', 'row_bcast', 'row_newbcast')

class Inst:
    __slots__ = ('text', 'op', 'ops', 'mods', 'cls', 'w', 'r', 'A', 'B', 'C', 'passes', 'dpp', 'label', 'target', 'wide', 'nops', 'lds', 'sel', 'addr')
    def __init__(self, text):
        self.text = text; self.label = None; self.target = None
        self.w = set(); self.r = set(); self.A = self.B = self.C = set(); self.passes = 0
        self.dpp = False; self.wide = set(); self.nops = 1; self.lds = False; self.sel = False; self.cls = None
        self.addr = set()
        t = text.split(';')[0].strip()
        if t.endswith(':'):
            self.cls = 'label'; self.label = t[:-1]; self.nops = 0; self.op = ''; return
        if not t or t.startswith('.'):
            self.cls = 'dir'; self.nops = 0; self.op = ''; return
        parts = t.split(None, 1)
        op = self.op = parts[0]
        rest = parts[1] if len(parts) > 1 else ''
        rest2 = re.sub(r'\[[^\]]*\]', lambda m: m.group(0).replace(',', '/'), rest)
        ops = [x.strip() for x in rest2.split(',')] if rest else []
        mods = ''
        if ops:
            lp = ops[-1].split(None, 1)
            ops[-1] = lp[0]
            if len(lp) > 1: mods = lp[1]
        self.ops = ops; self.mods = mods
        R = lambda i: set(regs_of(ops[i])) if i < len(ops) else set()
        allr = lambda lo: set().union(*[set(regs_of(x)) for x in ops[lo:]]) if len(ops) > lo else set()
        base = op.replace('_e32', '').replace('_e64', '').replace('_dpp', '').replace('_sdwa', '')
        if op.startswith('v_mfma'):
            self.cls = 'mfma'; self.w = R(0); self.A = R(1); self.B = R(2); self.C = R(3); self.r = self.A | self.B | self.C
            self.passes = 8 if '32x32' in op else 4
        elif op.startswith('v_'):
            self.cls = 'valu'
            if base in TRANS: self.cls = 'trans'
            self.dpp = any(x in mods or x in rest for x in DPPW)
            self.sel = ('dst_sel' in rest and 'dst_sel:DWORD' not in rest) or ('op_sel' in rest and 'pk' not in op)
            if base.startswith('v_permlane') and 'swap' in base or base == 'v_swap_b32':
                self.w = R(0) | R(1); self.r = R(0) | R(1)
            elif base.startswith('v_cmp'):
                self.w = R(0); self.r = allr(1)
                if base.startswith('v_cmpx'): self.w |= {('s', 'exec_lo'), ('s', 'exec_hi')}
            elif '_co_' in base or base.startswith('v_div_scale') or base.startswith('v_mad_u64'):
                self.w = R(0) | R(1); self.r = allr(2)
            elif base == 'v_nop':
                pass
            else:
                self.w = R(0); self.r = allr(1)
                if base.startswith(('v_fmac', 'v_mac', 'v_dot2c', 'v_writelane', 'v_pk_fmac')) or self.dpp or self.sel:
                    self.r |= R(0)
                if base.startswith('v_div_fmas'): self.r |= {('s', 'vcc_lo'), ('s', 'vcc_hi')}
        elif op.startswith(('buffer_', 'global_')):
            self.cls = 'vmem'
            self.lds = (' lds' in ' ' + mods) or '_lds_' in op
            if op in ('buffer_wbl2', 'buffer_inv'):
                pass
            elif self.lds:
                self.r = allr(0) | {('s', 'm0')}
            elif '_load' in op:
                self.w = R(0) if 'nowait' not in text else set(); self.r = allr(1)
            elif '_store' in op:
                self.r = allr(0)
                d = R(0) if op.startswith('buffer_') else R(1)
                if len(d) >= 3: self.wide = d
            elif '_atomic' in op:
                self.r = allr(0)
                if 'sc0' in mods:
                    self.w = R(0)
            else: raise ValueError(text)
        elif op.startswith('ds_'):
            self.cls = 'ds'
            if op.startswith(('ds_read', 'ds_bpermute', 'ds_permute', 'ds_swizzle')) or '_rtn' in op:
                self.w = R(0); self.r = allr(1)
            else:
                self.r = allr(0)
        elif op in ('s_memtime', 's_memrealtime') and 'stamp' in text:
            self.cls = 'salu'
        elif op.startswith(('s_load', 's_buffer_load', 's_memtime', 's_memrealtime')):
            self.cls = 'smem'; self.w = R(0); self.r = allr(1)
        elif op.startswith('s_'):
            self.cls = 'salu'
            if op == 's_nop': self.nops = int(ops[0], 0) + 1
            elif op.startswith(('s_branch', 's_cbranch')): self.target = ops[0]; self.cls = 'branch'
            elif op.startswith(('s_cmp', 's_waitcnt', 's_barrier', 's_endpgm', 's_setprio', 's_sleep', 's_bitcmp', 's_setreg', 's_sethalt')):
                self.r = allr(0)
            else:
                self.w = R(0); self.r = allr(1)
                if 'saveexec' in op: self.w |= {('s', 'exec_lo'), ('s', 'exec_hi')}
                if op.startswith(('s_addk', 's_mulk')): self.r |= R(0)
        else:
            raise ValueError('unknown instr: ' + text)

def isv(S): return {x for x in S if x[0] in 'va'}
def iss(S): return {x for x in S if x[0] == 's'}
EXEC = {('s', 'exec_lo'), ('s', 'exec_hi')}
VAL = ('valu', 'trans')

def need(p, c):
    n = 0
    pv = p.cls in VAL
    if pv:
        wv = isv(p.w); ws = iss(p.w)
        if c.cls == 'mfma' and wv & c.r: n = max(n, 2)
        if c.cls == 'mfma' and ws & EXEC: n = max(n, 4)
        if c.cls in VAL:
            if c.dpp and wv & c.r: n = max(n, 2)
            if c.dpp and ws & EXEC: n = max(n, 5)
            if c.op.startswith('v_permlane') and wv & c.r: n = max(n, 2)
            if c.op.startswith('v_permlane') and ws & EXEC: n = max(n, 4)
            if c.op.startswith(('v_readlane', 'v_readfirstlane')) and wv & c.r: n = max(n, 1)
            if c.op.startswith(('v_readlane', 'v_readfirstlane', 'v_writelane')) and ws & EXEC: n = max(n, 4)
            if c.op.startswith(('v_readlane', 'v_writelane')) and ws & c.r: n = max(n, 4)
            if c.op.startswith('v_div_fmas') and ws & c.r: n = max(n, 4)
            if ws & c.r: n = max(n, 2)
            if p.cls == 'trans' and c.cls != 'trans' and wv & c.r: n = max(n, 1)
            if p.sel and wv & (c.r | c.w): n = max(n, 1)
        if c.cls == 'vmem' and ws & c.r: n = max(n, 5)
        if c.cls == 'branch' and ('vcc' in c.op and ws & {('s', 'vcc_lo')} or 'exec' in c.op and ws & EXEC): n = max(n, 5)
    if p.cls == 'vmem' and p.wide:
        if c.cls in VAL + ('mfma',) and p.wide & c.w: n = max(n, 2)
        elif p.wide & c.w: n = max(n, 1)
    if p.cls == 'salu' and ('s', 'm0') in p.w and ('s', 'm0') in c.r and c.cls in ('vmem', 'ds'): n = max(n, 1)
    if p.cls == 'mfma':
        k8 = p.passes == 8
        D = p.w
        if c.cls == 'mfma':
            if D & c.C:
                if not (D == c.C and c.passes == p.passes): n = max(n, 10 if k8 else 6)
            if D & (c.A | c.B): n = max(n, 12 if k8 else 8)
            if D & c.w and not (D & c.C): n = max(n, 12 if k8 else 8)
        elif c.cls in VAL + ('vmem', 'ds'):
            if D & (c.r | c.w): n = max(n, 12 if k8 else 8)
            if c.cls in VAL and p.C & c.w: n = max(n, 7 if k8 else 3)
    return n

class Kern:
    def __init__(self, name):
        self.name = name; self.ins = []; self.uid = 0
    def __call__(self, text):
        for line in text.split('\n'):
            line = line.strip()
            if line and not line.startswith(';'): self.ins.append(Inst(line))
            elif line: self.ins.append(Inst('.; ' ) if False else self._c(line))
    def _c(self, line):
        i = Inst(''); i.text = line; return i
    def lab(self, base='L'):
        self.uid += 1; return f"{self.name}_{base}{self.uid}"
    def fix(self, verbose=False):
        ins = self.ins
        labels = {x.label: i for i, x in enumerate(ins) if x.cls == 'label'}
        srcs = {}
        for i, x in enumerate(ins):
            if x.cls == 'branch': srcs.setdefault(labels[x.target], []).append(i)
        pre = [0] * len(ins); total = 0
        for i, c in enumerate(ins):
            if c.cls in (None, 'label', 'dir') or c.op == 's_nop': continue
            worst = 0
            stack = [(i-1, 0, True)]; seen = set()
            while stack:
                j, d, lin = stack.pop()
                while j >= 0 and d < 20:
                    p = ins[j]
                    if p.cls in (None, 'dir'): j -= 1; continue
                    if (j, d) in seen: break
                    seen.add((j, d))
                    if p.cls == 'label':
                        for b in srcs.get(j, []): stack.append((b, d, False))
                        j -= 1; lin = True; continue
                    if lin and p.op in ('s_branch', 's_endpgm'): break
                    lin = True
                    n = need(p, c)
                    if n - d > worst: worst = n - d
                    d += p.nops + pre[j]
                    j -= 1
            if worst > 0:
                if verbose: print(f"; nop {worst} before {c.text}", file=sys.stderr)
                total += worst; pre[i] = worst
        out = []
        for i, c in enumerate(ins):
            w = pre[i]
            while w > 0:
                k = min(w, 16); out.append(Inst(f"s_nop {k-1}")); w -= k
            out.append(c)
        self.ins = out
        return total
    def autowait(self):
        out = []; vm = []; lg = []
        for x in self.ins:
            if x.cls in (None, 'label', 'dir'):
                out.append(x); continue
            if x.op == 's_waitcnt':
                m = re.search(r'vmcnt\((\d+)\)', x.text)
                if m:
                    n = int(m.group(1)); vm = vm[len(vm)-n:] if 0 < n < len(vm) else ([] if n == 0 else vm)
                m = re.search(r'lgkmcnt\((\d+)\)', x.text)
                if m:
                    n = int(m.group(1))
                    if n == 0: lg = []
                    elif not any(k == 's' for k, _ in lg): lg = lg[len(lg)-n:] if n < len(lg) else lg
                out.append(x); continue
            use = x.r | x.w
            wv = wl = None
            for i, w in enumerate(vm):
                if w & use: wv = len(vm) - 1 - i
            for i, (k, w) in enumerate(lg):
                if w & use: wl = len(lg) - 1 - i
            if wl is not None and any(k == 's' for k, _ in lg): wl = 0
            if wv is not None or wl is not None:
                t = 's_waitcnt'
                if wv is not None:
                    wv = min(wv, 63); t += f' vmcnt({wv})'; vm = vm[len(vm)-wv:] if wv else []
                if wl is not None:
                    wl = min(wl, 15); t += f' lgkmcnt({wl})'; lg = lg[len(lg)-wl:] if wl else []
                out.append(Inst(t))
            if x.cls == 'vmem': vm.append(x.w)
            elif x.cls == 'ds': lg.append(('d', x.w))
            elif x.cls == 'smem': lg.append(('s', x.w))
            out.append(x)
        self.ins = out
    def check(self, maxforks=64):
        ins = self.ins
        labels = {x.label: i for i, x in enumerate(ins) if x.cls == 'label'}
        errs = []
        forks = [0]
        def run(i, vm, lg, taken):
            while i < len(ins):
                x = ins[i]
                if x.cls in (None, 'label', 'dir'): i += 1; continue
                if x.op == 's_endpgm': return
                if x.op == 's_waitcnt':
                    t = x.text
                    m = re.search(r'vmcnt\((\d+)\)', t)
                    if m:
                        n = int(m.group(1)); vm = vm[len(vm)-n:] if n < len(vm) else vm
                        if n == 0: vm = []
                    m = re.search(r'lgkmcnt\((\d+)\)', t)
                    if m:
                        n = int(m.group(1))
                        if n == 0: lg = []
                        elif not any(k == 's' for k, _, _ in lg):
                            lg = lg[len(lg)-n:] if n < len(lg) else lg
                    i += 1; continue
                use = x.r | x.w
                for (w, t) in vm:
                    if w & use: errs.append(f"vmcnt hazard: '{x.text}' touches pending '{t}'")
                for (k, w, t) in lg:
                    if w & use: errs.append(f"lgkm hazard: '{x.text}' touches pending '{t}'")
                if x.cls == 'vmem':
                    vm = vm + [(x.w, x.text)]
                    if len(vm) > 63: errs.append(f"vmcnt overflow at {x.text}")
                elif x.cls == 'ds': lg = lg + [('d', x.w, x.text)]
                elif x.cls == 'smem': lg = lg + [('s', x.w, x.text)]
                if x.cls == 'branch':
                    tgt = labels[x.target]
                    if x.op == 's_branch':
                        if tgt < i and taken.get(i, 0) >= 2: return
                        taken = dict(taken); taken[i] = taken.get(i, 0) + 1
                        i = tgt; continue
                    if tgt < i:
                        if taken.get(i, 0) < 1:
                            taken = dict(taken); taken[i] = 1; i = tgt; continue
                        taken = dict(taken); taken[i] = 0
                    else:
                        if forks[0] < maxforks:
                            forks[0] += 1
                            run(tgt, vm, lg, taken)
                if len(errs) > 20: return
                i += 1
        run(0, [], [], {})
        return sorted(set(errs))
    def maxregs(self):
        mv = ma = ms = -1
        for x in self.ins:
            for c, n in (x.r | x.w):
                if isinstance(n, int):
                    if c == 'v': mv = max(mv, n)
                    elif c == 'a': ma = max(ma, n)
                    else: ms = max(ms, n)
        return mv, ma, ms
    def text(self):
        o = []
        for x in self.ins:
            o.append(x.text if x.cls == 'label' else '    ' + x.text)
        return '\n'.join(o)

def build(header, kerns, path, verbose=False):
    o = [header.rstrip('\n')]
    for k, g, b, lds, opts in kerns:
        for _ in range(opts.get('repeat', 1)):
            o.append(f"; @launch kernel={k.name} grid=({g},1,1) block=({b},1,1) lds={lds}")
    o.append('.amdgcn_target "amdgcn-amd-amdhsa--gfx950"\n.text')
    seen = set(); descs = []
    for k, g, b, lds, opts in kerns:
        if k.name in seen: continue
        seen.add(k.name)
        if opts.get('auto', True): k.autowait()
        n = k.fix(verbose)
        errs = k.check()
        mv, ma, ms = k.maxregs()
        print(f"{k.name}: {sum(1 for x in k.ins if x.nops)} instrs, nops inserted {n}, v{mv} a{ma} s{ms}", file=sys.stderr)
        for e in errs: print("  ERR", e, file=sys.stderr)
        assert not errs or opts.get('force'), "waitcnt errors"
        acc = max(4, (mv + 1 + 3) // 4 * 4)
        nfv = acc + ma + 1 if ma >= 0 else mv + 1
        nfv = max(nfv, opts.get('minv', 0))
        o.append(f".globl {k.name}\n.p2align 8\n.type {k.name},@function\n{k.name}:")
        o.append(k.text())
        o.append("    s_endpgm")
        descs.append(f""".p2align 6
.amdhsa_kernel {k.name}
  .amdhsa_next_free_vgpr {nfv}
  .amdhsa_next_free_sgpr 102
  .amdhsa_accum_offset {acc}
  .amdhsa_group_segment_fixed_size 0
  .amdhsa_kernarg_size 120
  .amdhsa_user_sgpr_count 2
  .amdhsa_user_sgpr_kernarg_segment_ptr 1
  .amdhsa_system_sgpr_workgroup_id_x 1
  .amdhsa_float_denorm_mode_32 3
  .amdhsa_float_denorm_mode_16_64 3
.end_amdhsa_kernel""")
    o.append('.section .rodata,"a"')
    o.extend(descs)
    open(path, 'w').write('\n'.join(o) + '\n')
```

```python
from asmlib import *
WS_MOD  = 0
WS_XN   = 0x10000
WS_PART = 0x200000
WS_X1   = 0x1000000
WS_H2   = 0x1200000
WS_Z1   = 0x1400000
WS_Z2   = 0x1800000
WS_ST   = 0x1C00000
WS_U    = 0x1D00000
WS_DBG  = 0x4000000
XB = 2048*896
LOG2E = 1.4426950408889634
import struct
def f2u(x): return struct.unpack('<I', struct.pack('<f', x))[0]
def hx(x): return hex(f2u(x))

def srd(k, d, lo, hi, n, off=0):
    if off:
        k(f"s_add_u32 s{d}, s{lo}, {off}\ns_addc_u32 s{d+1}, s{hi}, 0")
    else:
        k(f"s_mov_b32 s{d}, s{lo}\ns_mov_b32 s{d+1}, s{hi}")
    k(f"s_mov_b32 s{d+2}, {n}\ns_mov_b32 s{d+3}, 0x20000")

def unpack(k, dst, src, n, sM):
    for i in range(n):
        k(f"v_lshlrev_b32 v{dst+2*i}, 16, v{src+i}\nv_and_b32 v{dst+2*i+1}, s{sM}, v{src+i}")

DP = "row_mask:0xf bank_mask:0xf"
def wsum(k, xs, ts, lo=True):
    for pat in ("quad_perm:[1,0,3,2]", "quad_perm:[2,3,0,1]", "row_half_mirror", "row_mirror"):
        for x in xs: k(f"v_add_f32_dpp v{x}, v{x}, v{x} {pat} {DP}")
    for sw in ("v_permlane16_swap_b32", "v_permlane32_swap_b32"):
        for x, t in zip(xs, ts): k(f"v_mov_b32 v{t}, v{x}")
        for x, t in zip(xs, ts): k(f"{sw} v{x}, v{t}")
        for x, t in zip(xs, ts): k(f"v_add_f32 v{x}, v{x}, v{t}")
def rnd(k, d, s_): k(f"v_cvt_pk_bf16_f32 v{d}, 0, v{s_}")
```

```python
from common import *

def gen_k0(name, code_lo=None, code_hi=None, lin=False):
    k = Kern(name)
    k(f"""
    s_load_dwordx2 s[4:5], s[0:1], 0
    s_load_dwordx2 s[6:7], s[0:1], 112
    s_load_dwordx2 s[28:29], s[0:1], 24
    s_load_dwordx4 s[32:35], s[0:1], 80
    s_mov_b32 s30, 0xffff0000
    v_and_b32 v1, 63, v0
    v_lshrrev_b32 v2, 6, v0
    s_cmp_ge_u32 s2, 298
    s_cbranch_scc1 {name}_end
    s_cmp_lt_u32 s2, 42
    s_cbranch_scc1 {name}_mod
    """)
    k(f"""
    s_sub_u32 s3, s2, 42
    s_mul_i32 s31, s3, {8*896}
    v_mul_u32_u24 v3, {2*896}, v2
    v_lshl_add_u32 v3, v1, 4, v3
    v_cmp_gt_u32 vcc, 56, v1
    v_mov_b32 v4, 0x7ffffff0
    v_cndmask_b32 v3, v4, v3, vcc
    s_waitcnt lgkmcnt(0)
    """)
    srd(k, 8, 4, 5, XB)
    srd(k, 12, 6, 7, XB, WS_XN)
    srd(k, 16, 28, 29, 448*8192)
    k(f"""
    buffer_load_dwordx4 v[8:11], v3, s[8:11], s31 offen
    buffer_load_dwordx4 v[12:15], v3, s[8:11], s31 offen offset:896
    s_lshr_b32 s36, s3, 3
    s_and_b32 s37, s2, 7
    s_mul_i32 s38, s36, {14*8192}
    s_lshl_b32 s37, s37, 10
    s_add_u32 s38, s38, s37
    v_lshrrev_b32 v5, 4, v0
    v_lshlrev_b32 v5, 13, v5
    v_and_b32 v6, 15, v0
    v_lshl_add_u32 v5, v6, 6, v5
    v_cmp_gt_u32 s[40:41], 224, v0
    v_cndmask_b32 v5, v4, v5, s[40:41]
    LINX
    buffer_load_dword v60, v5, s[16:19], s38 offen
    """.replace("LINX", "s_and_b32 s37, s2, 7\ns_mul_i32 s38, s37, 458752\ns_mul_i32 s37, s36, 14336\ns_add_u32 s38, s38, s37\nv_lshlrev_b32 v5, 6, v0\nv_cndmask_b32 v5, v4, v5, s[40:41]" if lin else "").replace("v_cmp_gt_u32 s[40:41], 224, v0", "s_movk_i32 s39, 224\nv_cmp_gt_u32 s[40:41], s39, v0"))
    if code_lo:
        k(f"""
        s_getpc_b64 s[20:21]
        {name}_pc:
        s_add_u32 s20, s20, {code_lo}-{name}_pc
        s_addc_u32 s21, s21, 0
        s_mov_b32 s22, {code_hi}-{code_lo}
        s_mov_b32 s23, 0x20000
        s_lshl_b32 s36, s36, 12
        v_lshlrev_b32 v6, 4, v0
        buffer_load_dword v61, v6, s[20:23], s36 offen
        """)
    srd(k, 24, 6, 7, 64*3584, WS_ST)
    k(f"""
    s_mul_i32 s36, s3, 896
    v_lshlrev_b32 v6, 4, v0
    v_cmp_gt_u32 s[40:41], 56, v0
    v_cndmask_b32 v6, v4, v6, s[40:41]
    v_mov_b32 v56, -1
    v_mov_b32 v57, -1
    v_mov_b32 v58, -1
    v_mov_b32 v59, -1
    buffer_store_dwordx4 v[56:59], v6, s[24:27], s36 offen sc1
    """)
    X = [16, 24]
    unpack(k, 16, 8, 4, 30); unpack(k, 24, 12, 4, 30)
    S = [32, 33]; T = [34, 35]
    for x, s_ in zip(X, S):
        k(f"v_add_f32 v{s_}, v{x}, v{x+1}")
        for i in range(2, 8): k(f"v_add_f32 v{s_}, v{s_}, v{x+i}")
    wsum(k, S, T)
    M = [36, 37]; Q = [38, 39]
    k(f"s_mov_b32 s39, {hx(1/448)}")
    for s_, m in zip(S, M): k(f"v_mul_f32 v{m}, s39, v{s_}")
    for x, m, q in zip(X, M, Q):
        for i in range(8):
            k(f"v_sub_f32 v40, v{x+i}, v{m}")
            k(f"v_mul_f32 v{q}, v40, v40" if i == 0 else f"v_fmac_f32 v{q}, v40, v40")
        k(f"v_cndmask_b32 v{q}, 0, v{q}, vcc")
    wsum(k, Q, T)
    for x, m, q, p in zip(X, M, Q, (8, 12)):
        k(f"v_mul_f32 v{q}, s39, v{q}")
        rnd(k, q, q); rnd(k, m, m)
        k(f"v_add_f32 v{q}, {hx(1e-5)}, v{q}")
        rnd(k, q, q)
        k(f"v_sqrt_f32 v{q}, v{q}")
        rnd(k, q, q)
        k(f"v_rcp_f32 v{q}, v{q}")
        for i in range(8):
            k(f"v_sub_f32 v{x+i}, v{x+i}, v{m}")
            rnd(k, x+i, x+i)
            k(f"v_mul_f32 v{x+i}, v{x+i}, v{q}")
        for i in range(4): k(f"v_cvt_pk_bf16_f32 v{p+i}, v{x+2*i}, v{x+2*i+1}")
    k(f"""
    buffer_store_dwordx4 v[8:11], v3, s[12:15], s31 offen sc1
    buffer_store_dwordx4 v[12:15], v3, s[12:15], s31 offen offset:896 sc1
    s_waitcnt vmcnt(0)
    s_endpgm
    {name}_mod:
    s_waitcnt lgkmcnt(0)
    """)
    srd(k, 8, 32, 33, 896)
    srd(k, 12, 34, 35, 448*5376)
    srd(k, 16, 6, 7, 5376, WS_MOD)
    k(f"""
    v_lshrrev_b32 v3, 3, v0
    v_lshlrev_b32 v4, 1, v3
    v_mul_u32_u24 v3, 5376, v3
    v_and_b32 v5, 7, v0
    v_lshl_add_u32 v3, v5, 4, v3
    s_lshl_b32 s31, s2, 7
    """)
    for i in range(14): k(f"buffer_load_ushort v{8+i}, v4, s[8:11], 0 offen offset:{64*i}")
    for i in range(14):
        k(f"buffer_load_dwordx4 v[{24+4*i}:{27+4*i}], v3, s[12:15], s31 offen")
        if i < 13: k(f"s_add_u32 s31, s31, {32*5376}")
    L32 = struct.unpack('<f', struct.pack('<f', LOG2E))[0]
    k(f"s_mov_b32 s36, {hx(-LOG2E)}\ns_mov_b32 s37, {hx(-(LOG2E-L32))}")
    for i in range(14):
        c = 8+i
        k(f"""v_lshlrev_b32 v{c}, 16, v{c}
        v_mul_f32 v6, s36, v{c}
        v_fma_f32 v7, s36, v{c}, -v6
        v_fmac_f32 v7, s37, v{c}
        v_min_f32 v6, {hx(126.0)}, v6
        v_exp_f32 v6, v6
        v_mul_f32 v7, {hx(0.6931471805599453)}, v7
        v_fmac_f32 v6, v6, v7
        v_add_f32 v6, 1.0, v6
        v_rcp_f32 v7, v6
        v_mul_f32 v22, v{c}, v7
        v_fma_f32 v23, -v22, v6, v{c}
        v_fma_f32 v{c}, v23, v7, v22""")
        rnd(k, c, c)
    A = 88
    for i in range(14):
        unpack(k, 80, 24+4*i, 4, 30)
        for j in range(8):
            k(f"v_mul_f32 v{A+j}, v{80+j}, v{8+i}" if i == 0 else f"v_fmac_f32 v{A+j}, v{80+j}, v{8+i}")
    for j in range(8): k(f"v_add_f32_dpp v{A+j}, v{A+j}, v{A+j} row_ror:8 {DP}")
    for sw in ("v_permlane16_swap_b32", "v_permlane32_swap_b32"):
        for j in range(8): k(f"v_mov_b32 v{80+j}, v{A+j}")
        for j in range(8): k(f"{sw} v{A+j}, v{80+j}")
        for j in range(8): k(f"v_add_f32 v{A+j}, v{A+j}, v{80+j}")
    k(f"""
    v_lshlrev_b32 v6, 8, v2
    v_lshl_add_u32 v6, v5, 5, v6
    v_cmp_gt_u32 vcc, 8, v1
    s_and_saveexec_b64 s[40:41], vcc
    ds_write_b128 v6, v[{A}:{A+3}]
    ds_write_b128 v6, v[{A+4}:{A+7}] offset:16
    s_mov_b64 exec, s[40:41]
    s_waitcnt lgkmcnt(0)
    s_barrier
    v_cmp_gt_u32 vcc, 64, v0
    s_and_saveexec_b64 s[40:41], vcc
    v_lshlrev_b32 v6, 2, v0
    v_lshlrev_b32 v7, 1, v0
    s_cbranch_execz {name}_end
    ds_read_b32 v8, v6
    ds_read_b32 v9, v6 offset:256
    ds_read_b32 v10, v6 offset:512
    ds_read_b32 v11, v6 offset:768
    s_lshl_b32 s31, s2, 7
    v_add_f32 v8, v8, v9
    v_add_f32 v10, v10, v11
    v_add_f32 v8, v8, v10
    v_cvt_pk_bf16_f32 v8, v8, v8
    buffer_store_short v8, v7, s[16:19], s31 offen sc1
    s_waitcnt vmcnt(0)
    {name}_end:
    """)
    return k
```

```python
from common import *

SLOT = 32768
def slot(st): return (st % 5) * SLOT
VL = 1; VD = 2; RQ, RK, RV, RW = 6, 7, 8, 9; XA = 10; VST = 18; VM = 19; VL0, VL1 = 20, 21; T0 = 22
RA = 32; RB = 160; RC = 224
AH = 256
AR = 256+112
AO = 256+144
AS = 256+176
NR = 6
NRING = 8
SQ, SK, SV, SW, SS = 8, 12, 16, 20, 24
sM8, sM4, sOQ, sOK, sOW, sOF, sOP, sMASK, sW, sC = 40, 41, 42, 43, 44, 45, 46, 47, 48, 49

def gen_k1(name, stop=None, pref=True, stamps=False, sps=(2,4,4,2), exp=None):
    k = Kern(name)
    nst = [0]
    def stamp():
        if stamps:
            k(f's_memtime s[{60+2*nst[0]}:{61+2*nst[0]}] ; stamp'); nst[0] += 1
    stamp()
    vmq = []
    def vm(text, tag):
        k(text); vmq.append(tag)
    def wait_stage(st):
        last = max(i for i, t in enumerate(vmq) if t == ('d', st))
        n = sum(1 for t in vmq[last+1:] if t != 's')
        return n
    def dma_items(st):
        items = []
        for grp in range(2):
            if st < 14:
                m0 = f"s_add_u32 m0, s{sM8}, {slot(st)+grp*4096}"
                so = f"s_add_u32 s{sOF}, s{sOQ}, {(32*st+16*grp)*(1024 if exp == 'lin' else 8192)}"; R = SQ; vs = [VD, VD+1, VD+2, VD+3]
            elif st < 30:
                s_ = (st-14) % 8
                m0 = f"s_add_u32 m0, s{sM4}, {slot(st)+grp*16384}"
                so = f"s_add_u32 s{sOF}, s{sOK}, {s_*32768+grp*16384}"
                if st < 22: R = SK; vs = [VD, VD+1, VD+2, VD+3]
                else: R = SV; vs = [VD, VD+1, VD, VD+1]
            else:
                j, q = divmod(st-30, 2)
                m0 = f"s_add_u32 m0, s{sM8}, {slot(st)+grp*4096}"
                so = f"s_add_u32 s{sOF}, s{sOW}, {(128*q+32*grp)*896+j*128}"; R = SW; vs = [VD, VD+1, VD+2, VD+3]
            for ii in range(4):
                it = []
                if ii == 0:
                    if grp == 0:
                        if st == 14:
                            it += [(f"v_accvgpr_read_b32 v{VD}, {r(AS)}", None)] + [(f"v_xor_b32 v{VD+x}, {32*x}, v{VD}", None) for x in (1, 2, 3)]
                        if st == 22:
                            it += [(f"v_accvgpr_read_b32 v{VD}, {r(AS+1)}", None), (f"v_xor_b32 v{VD+1}, 128, v{VD}", None)]
                        if st == 30:
                            it += [(f"v_accvgpr_read_b32 v{VD}, {r(AS+2)}", None)] + [(f"v_add_u32 v{VD+x}, {6144*x}, v{VD}", None) for x in (1, 2, 3)]
                    it += [(m0, None), (so, None)]
                it.append((f"buffer_load_dwordx4 v{vs[ii]}, s[{R}:{R+3}], s{sOF} offen offset:{ii*1024} lds", ('d', st)))
                items.append(it)
        return items
    def emit_item(it):
        for t, tag in it:
            if tag: vm(t, tag)
            else: k(t)

    k(f"""
    s_load_dwordx4 s[28:31], s[0:1], 8
    s_load_dwordx4 s[32:35], s[0:1], 24
    s_load_dwordx2 s[6:7], s[0:1], 112
    v_and_b32 v{VL}, 63, v0
    v_lshrrev_b32 v22, 6, v0
    s_cmp_ge_u32 s2, 256
    s_cbranch_scc1 {name}_end
    v_readfirstlane_b32 s{sW}, v22
    s_and_b32 s3, s2, 7
    s_lshr_b32 s4, s2, 3
    s_mov_b32 s{sMASK}, 0xffff0000
    s_lshl_b32 s{sM8}, s{sW}, 13
    s_lshl_b32 s{sM4}, s{sW}, 12
    s_lshl_b32 s5, s3, 10
    s_add_u32 s{sOQ}, s5, s{sM8}
    s_lshl_b32 s5, s3, 20
    s_add_u32 s{sOK}, s5, {1536*512}
    s_lshl_b32 s50, s4, 13
    s_add_u32 s50, s50, s{sOK}
    s_add_u32 s{sOK}, s{sOK}, s{sM4}
    s_lshr_b32 s36, s{sW}, 1
    s_and_b32 s37, s{sW}, 1
    s_lshl_b32 s5, s3, 9
    s_lshl_b32 s38, s36, 8
    s_add_u32 s5, s5, s38
    s_lshl_b32 s38, s37, 6
    s_add_u32 s5, s5, s38
    s_mul_i32 s{sOW}, s5, 896
    s_mul_i32 s51, s3, {512*896}
    s_mul_i32 s5, s4, 14336
    s_add_u32 s51, s51, s5
    s_mul_i32 s{sOP}, s3, {XB}
    s_lshl_b32 s5, s4, 1
    s_add_u32 s5, s5, s37
    s_mul_i32 s5, s5, 28672
    s_add_u32 s{sOP}, s{sOP}, s5
    s_lshl_b32 s5, s36, 11
    s_add_u32 s{sOP}, s{sOP}, s5
    s_add_u32 s{sOP}, s{sOP}, {WS_PART}
    s_lshl_b32 s5, s4, 2
    s_add_u32 s5, s5, s{sW}
    s_mul_i32 s52, s5, {16*896}
    s_add_u32 s52, s52, {WS_XN}
    v_lshlrev_b32 v23, 4, v{VL}
    s_lshl_b32 s5, s{sW}, 6
    v_xor_b32 v{VD}, s5, v23
    v_add_u32 v{VD+1}, {31744}, v{VD}
    v_add_u32 v{VD+2}, {2*31744}, v{VD}
    v_add_u32 v{VD+3}, {3*31744}, v{VD}
    s_waitcnt lgkmcnt(0)
    """)
    if exp == 'lin':
        k(f"s_mul_i32 s{sOQ}, s3, 458752\ns_lshl_b32 s5, s{sW}, 10\ns_add_u32 s{sOQ}, s{sOQ}, s5")
        for x in (1, 2, 3): k(f"v_add_u32 v{VD+x}, {x*3072}, v{VD}")
    stamp()
    srd(k, SS, 6, 7, WS_X1)
    srd(k, SQ, 32, 33, 448*8192)
    k("s_mov_b32 exec_hi, 0x00ffffff")
    vm(f"buffer_load_dwordx4 v[{RB}:{RB+3}], v23, s[{SS}:{SS+3}], 0 offen offset:{WS_MOD+896}", 'l')
    vm(f"buffer_load_dwordx4 v[{RB+4}:{RB+7}], v23, s[{SS}:{SS+3}], 0 offen offset:{WS_MOD}", 'l')
    for i in range(16):
        if i and i % 4 == 0: k(f"s_add_u32 s52, s52, {4*896}")
        vm(f"buffer_load_dwordx4 v[{RA+4*i}:{RA+4*i+3}], v23, s[{SS}:{SS+3}], s52 offen offset:{(i%4)*896}", 'l')
    k("s_mov_b32 exec_hi, -1")
    for st in range(3):
        for it in dma_items(st): emit_item(it)
    srd(k, SK, 28, 29, 8 << 20)
    srd(k, SV, 30, 31, 8 << 20)
    srd(k, SW, 34, 35, 4096*896)
    if pref:
        k(f"v_lshlrev_b32 v24, 5, v0\nv_mul_u32_u24 v25, 56, v0")
        vm(f"buffer_load_dword v{RC}, v24, s[{SK}:{SK+3}], s50 offen", 'l')
        vm(f"buffer_load_dword v{RC+1}, v24, s[{SV}:{SV+3}], s50 offen", 'l')
        vm(f"buffer_load_dword v{RC+2}, v25, s[{SW}:{SW+3}], s51 offen", 'l')
    k(f"""
    v_lshrrev_b32 v24, 5, v{VL}
    v_and_b32 v25, 31, v{VL}
    v_bfe_u32 v26, v{VL}, 2, 2
    v_bfe_u32 v27, v{VL}, 4, 1
    v_and_b32 v28, 3, v{VL}
    v_lshlrev_b32 v29, 5, v27
    v_lshl_add_u32 v30, v28, 3, v29
    v_and_b32 v31, 1, v28
    v_lshlrev_b32 v31, 1, v31
    v_lshrrev_b32 v28, 1, v28
    v_or_b32 v28, v28, v31
    v_lshl_add_u32 v29, v28, 3, v29
    """)
    k(f"""
    v_mul_u32_u24 v{RQ}, {8192+64}, v26
    v_lshl_add_u32 v{RQ}, v24, 11, v{RQ}
    v_add_u32 v{RQ}, v{RQ}, v29
    s_lshl_b32 s5, s36, 9
    v_add_u32 v{RQ}, s5, v{RQ}
    v_and_b32 v31, 15, v25
    v_xor_b32 v31, v31, v24
    v_lshlrev_b32 v31, 4, v31
    v_lshl_add_u32 v{RK}, v25, 9, v31
    v_mul_u32_u24 v{RV}, {512+64}, v26
    v_lshl_add_u32 v{RV}, v24, 11, v{RV}
    v_add_u32 v{RV}, v{RV}, v30
    v_lshlrev_b32 v{RW}, 7, v26
    v_lshl_add_u32 v{RW}, v24, 9, v{RW}
    v_add_u32 v{RW}, v{RW}, v29
    v_lshrrev_b32 v31, 1, v26
    v_xor_b32 v31, s36, v31
    v_lshl_add_u32 v{RW}, v31, 6, v{RW}
    s_lshl_b32 s5, s36, 14
    v_add_u32 v{RW}, s5, v{RW}
    v_lshlrev_b32 v{VST}, 4, v25
    v_lshl_add_u32 v{VST}, v24, 9, v{VST}
    s_lshl_b32 s5, s37, 3
    v_xor_b32 v31, s5, v25
    v_xor_b32 v31, v31, v24
    v_lshlrev_b32 v31, 4, v31
    v_lshl_add_u32 v31, v24, 9, v31
    v_accvgpr_write_b32 {r(AS)}, v31
    v_lshlrev_b32 v31, 2, v24
    v_xor_b32 v31, v31, v25
    v_lshlrev_b32 v31, 4, v31
    v_lshl_add_u32 v31, v24, 9, v31
    v_accvgpr_write_b32 {r(AS+1)}, v31
    v_lshrrev_b32 v31, 3, v{VL}
    v_mul_u32_u24 v31, 896, v31
    v_lshlrev_b32 v27, 2, v27
    v_and_b32 v28, 7, v{VL}
    v_xor_b32 v28, v28, v27
    v_lshl_add_u32 v31, v28, 4, v31
    v_accvgpr_write_b32 {r(AS+2)}, v31
    s_mul_i32 s5, s{sW}, {16*912}
    s_add_u32 s5, s5, {3*SLOT}
    v_add_u32 v23, s5, v23
    s_mul_i32 s5, s37, {32*912}
    s_add_u32 s5, s5, {3*SLOT}
    v_mul_u32_u24 v22, 912, v25
    v_lshl_add_u32 v22, v24, 4, v22
    v_add_u32 v22, s5, v22
    s_mov_b32 s{sC}, {hx(LOG2E/16)}
    """)
    C1 = RB+8; SA = RB+16; TT = RB+24
    k("s_mov_b32 exec_hi, 0x00ffffff")
    stamp()
    unpack(k, C1, RB, 4, sMASK); unpack(k, SA, RB+4, 4, sMASK)
    stamp()
    for i in range(8):
        k(f"v_add_f32 v{C1+i}, 1.0, v{C1+i}"); rnd(k, C1+i, C1+i)
    for i in range(16):
        x = RA+4*i; t = TT + 8*(i % 2)
        unpack(k, t, x, 4, sMASK)
        for j in range(4): k(f"v_pk_mul_f32 v[{t+2*j}:{t+2*j+1}], v[{t+2*j}:{t+2*j+1}], v[{C1+2*j}:{C1+2*j+1}]")
        for j in range(8): rnd(k, t+j, t+j)
        for j in range(4): k(f"v_pk_add_f32 v[{t+2*j}:{t+2*j+1}], v[{t+2*j}:{t+2*j+1}], v[{SA+2*j}:{SA+2*j+1}]")
        for j in range(4): k(f"v_cvt_pk_bf16_f32 v{x+j}, v{t+2*j}, v{t+2*j+1}")
        k(f"ds_write_b128 v23, v[{x}:{x+3}] offset:{i*912}")
    k("s_mov_b32 exec_hi, -1")
    stamp()
    k(f"s_waitcnt vmcnt({wait_stage(0)}) lgkmcnt(0)\ns_barrier")
    stamp()

    mf = []; rd = []; stage_first = {}
    def ring(n): return AR + 4*(n % NRING)
    def add(st, D, B, C, reads):
        n = len(mf)
        stage_first.setdefault(st, n)
        A = ring(n)
        mf.append(f"v_mfma_f32_32x32x16_bf16 {r(D,16)}, {r(A,4)}, {r(B,4)}, {r(D,16) if C else 0}")
        rd.append([x.replace('@0', r(A, 2)).replace('@1', r(A+2, 2)).replace('@', r(A, 4)) for x in reads])
    for st in range(14):
        for u in range(2):
            for dt in range(8):
                pre = [f"v_xor_b32 v{XA+dt}, {dt*64 | slot(st)}, v{RQ}"] if (u == 0 and dt < 4) else []
                add(st, RA+16*dt, AH+4*(2*st+u), st+u > 0, pre + [
                    f"ds_read_b64_tr_b16 @{e}, v{XA+(dt&3)} offset:{(4*u+e)*1024+(dt>>2)*256}" for e in range(2)])
    S0 = len(mf)
    for s_ in range(8):
        st = 14+s_
        for kt in range(2):
            for t in range(16):
                pre = [f"v_xor_b32 v{XA+t}, {32*t | slot(st)}, v{RK}"] if (kt == 0 and t < 8) else []
                add(st, RC+16*kt, RB+4*t, t > 0, pre + [f"ds_read_b128 @, v{XA+(t&7)} offset:{256*(t>>3)+kt*16384}"])
    P0 = len(mf)
    OT = [RB, RB+16, RB+32, RB+48, AO, AO+16, RC, RC+16]
    for s_ in range(8):
        st = 22+s_
        for u in range(4):
            for dt in range(8):
                pre = [f"v_xor_b32 v{XA+dt}, {dt*64 | slot(st)}, v{RV}"] if (u == 0 and dt < 4) else []
                add(st, OT[dt], RA+4*(4*s_+u), s_+u > 0, pre + [
                    f"ds_read_b64_tr_b16 @{e}, v{XA+(dt&3)} offset:{u*8192+e*4096+(dt>>2)*256}" for e in range(2)])
    W0 = len(mf)
    OWN, OTH = RA, RA+64
    WA = [RB, RB+16]; WT = RB+32
    for j in range(7):
        order = [(0, 0), (1, 0), (0, 1), (1, 1)] if j == 0 else [(0, 0), (0, 1), (1, 0), (1, 1)]
        for oi, (q, oth) in enumerate(order):
            st = 30+2*j+q
            xa = XA + (oi & 1)
            for u in range(8):
                pre = [f"v_xor_b32 v{xa}, {oth*16384 | slot(st)}, v{RW}"] if u == 0 else []
                add(st, WA[j & 1], (OTH if oth else OWN)+4*(8*q+u), oi+u > 0, pre + [
                    f"ds_read_b64_tr_b16 @{e}, v{xa} offset:{u*2048+e*1024}" for e in range(2)])
    N = len(mf)
    if exp == 'halfrd':
        for n in range(N):
            if (n < S0 or n >= W0) and n % 2: rd[n] = [x for x in rd[n] if not x.startswith('ds_')]
    if exp == 'pair':
        for n in range(0, N, 2):
            if (n < S0 or n >= W0): rd[n] = rd[n] + rd[n+1]; rd[n+1] = []
    fill = [[] for _ in range(N+1)]
    pre_mf = [[] for _ in range(N+1)]
    bar = {}
    for st in range(1, 44):
        g = stage_first[st] - NR
        iss = [st+3] if st+3 < 44 else []
        if st == 1: iss = [3, 4]
        if st in (30, 31): iss = []
        bar[g] = (st, iss)
    hreads = [f"ds_read_b128 {r(AH+4*t,4)}, v22 offset:{32*t}" for t in range(28)]
    for g in range(9): fill[g] += hreads[2+3*g:5+3*g]
    for t in range(16):
        dt, jj = t >> 1, t & 1
        fill[S0-5+t] += [f"v_cvt_pk_bf16_f32 v{RB+4*t+i}, v{RA+16*dt+8*jj+2*i}, v{RA+16*dt+8*jj+2*i+1}" for i in range(4)]
    def stile(kt):
        c = RC+16*(kt & 1)
        mx = [f"v_max_f32 v{VM}, v{c}, v{c+1}" if (kt == 0 and i == 0) else f"v_max3_f32 v{VM}, v{VM}, v{c+2*i}, v{c+2*i+1}" for i in range(8)]
        pk = [f"v_cvt_pk_bf16_f32 v{RA+8*kt+i}, v{c+2*i}, v{c+2*i+1}" for i in range(8)]
        return mx, pk
    for kt in range(15):
        mx, pk = stile(kt)
        g0 = S0+16*(kt+1)+3
        for i in range(8): fill[g0+i] += [mx[i], pk[i]]
    def expk(kap):
        o = []
        for i in range(4):
            p = RA+4*kap+i; a_, b_ = T0+2*(i & 1), T0+2*(i & 1)+1
            first = kap == 0 and i == 0
            o.append([f"v_lshlrev_b32 v{a_}, 16, v{p}", f"v_and_b32 v{b_}, s{sMASK}, v{p}",
                      f"v_fma_f32 v{a_}, v{a_}, s{sC}, v{VM}", f"v_fma_f32 v{b_}, v{b_}, s{sC}, v{VM}",
                      f"v_exp_f32 v{a_}, v{a_}", f"v_exp_f32 v{b_}, v{b_}",
                      f"v_add_f32 v{VL0}, {'0' if first else f'v{VL0}'}, v{a_}", f"v_add_f32 v{VL1}, {'0' if first else f'v{VL1}'}, v{b_}",
                      f"v_cvt_pk_bf16_f32 v{p}, v{a_}, v{b_}"])
        return o
    mx, pk = stile(15)
    pre_mf[P0] += mx + [f"v_mov_b32 v{T0}, v{VM}"] + pk[:2] + [f"v_permlane32_swap_b32 v{VM}, v{T0}", f"v_max_f32 v{VM}, v{VM}, v{T0}",
                   f"v_cvt_pk_bf16_f32 v{VM}, 0, v{VM}", f"v_mul_f32 v{VM}, s{sC}, v{VM}", f"v_sub_f32 v{VM}, 0, v{VM}"]
    for x in expk(0): pre_mf[P0] += x
    pre_mf[P0] += pk[2:]
    for kap in range(1, 32):
        for i, x in enumerate(expk(kap)):
            g = P0+8*(kap-1)+2*i
            fill[g] += x[:5]; fill[g+1] += x[5:]
    fill[W0-7] += [f"v_add_f32 v{VL0}, v{VL0}, v{VL1}", f"v_mov_b32 v{VL1}, v{VL0}"]
    fill[W0-6] += [f"v_permlane32_swap_b32 v{VL0}, v{VL1}", f"v_add_f32 v{VL0}, v{VL0}, v{VL1}", f"v_rcp_f32 v{VL0}, v{VL0}",
                   f"s_lshl_b32 s5, s{sW}, 14", f"s_add_u32 s5, s5, {3*SLOT}", f"v_lshlrev_b32 v{XA+4}, 4, v{VL}",
                   f"v_add_u32 v{XA+4}, s5, v{XA+4}", f"s_xor_b32 s5, s{sW}, 2"]
    fill[W0-6] += [f"s_lshl_b32 s5, s5, 14", f"s_add_u32 s5, s5, {3*SLOT}", f"v_lshlrev_b32 v{XA+5}, 4, v{VL}", f"v_add_u32 v{XA+5}, s5, v{XA+5}"]
    def norm(dt, pkd):
        o = []; c = OT[dt]
        for b in range(2):
            src = c+8*b
            if c >= 256:
                o += [f"v_accvgpr_read_b32 v{T0+i}, {r(src+i)}" for i in range(8)]; src = T0
            if pkd: o += [f"v_pk_mul_f32 v[{src+2*i}:{src+2*i+1}], v[{src+2*i}:{src+2*i+1}], v[{VL0}:{VL1}] op_sel_hi:[1,0]" for i in range(4)]
            else: o += [f"v_mul_f32 v{src+i}, v{src+i}, v{VL0}" for i in range(8)]
            d = OWN+8*dt+4*b
            o += [f"v_cvt_pk_bf16_f32 v{d+i}, v{src+2*i}, v{src+2*i+1}" for i in range(4)]
            o += [f"ds_write_b128 v{XA+4}, v[{d}:{d+3}] offset:{(2*dt+b)*1024}"]
        return o
    fill[W0-3] += norm(0, False)[:13]
    fill[W0-2] += norm(0, False)[13:]
    fill[W0-1] += norm(1, False)
    pre_mf[W0] += norm(2, True) + norm(3, True)
    seq = norm(4, False) + norm(5, False) + norm(6, False) + norm(7, False)
    per = (len(seq)+7)//8
    for g in range(8): fill[W0+g] += seq[per*g:per*(g+1)]
    X1 = W0+8; X2 = W0+14
    oreads = [f"ds_read_b128 v[{OTH+4*i}:{OTH+4*i+3}], v{XA+5} offset:{i*1024}" for i in range(16)]
    for g in range(4): fill[X1+1+g] += oreads[4*g:4*g+4]
    def wepi(j):
        c = WA[j & 1]; o = []
        for b in range(2):
            t = WT+4*b
            o += [f"v_cvt_pk_bf16_f32 v{t+i}, v{c+8*b+2*i}, v{c+8*b+2*i+1}" for i in range(4)]
            o += [f"buffer_store_dwordx4 v[{t}:{t+3}], v{VST}, s[{SS}:{SS+3}], s{sOP} offen offset:{b*1024} sc1"]
        o += [f"s_add_u32 s{sOP}, s{sOP}, 4096"]
        return o
    for j in range(6):
        e = wepi(j); g = W0+32*(j+1)+3
        fill[g] += e[:2]; fill[g+1] += e[2:5]; fill[g+2] += e[5:7]; fill[g+3] += e[7:]
    def dump(regs, n):
        srd(k, 52, 6, 7, 64 << 20, WS_DBG)
        k(f"s_lshl_b32 s5, s2, 2\ns_add_u32 s5, s5, s{sW}\ns_mul_i32 s5, s5, {n*256}\nv_lshlrev_b32 v{T0}, 2, v{VL}\ns_waitcnt vmcnt(0) lgkmcnt(0)\ns_nop 15")
        for i in range(n):
            k(f"buffer_store_dword v{regs+i}, v{T0}, s[52:55], s5 offen\ns_add_u32 s5, s5, 256")
            if i % 32 == 31: k("s_waitcnt vmcnt(0)")
        k(f"s_waitcnt vmcnt(0)\ns_branch {name}_end")
    k("\n".join(hreads[:2]))
    for n in range(NR): k("\n".join(rd[n]))
    pend = []
    for n in range(N):
        if stop == 'Q' and n == S0+12: dump(RB, 64); break
        if stop == 'S' and n == P0+8: dump(RA, 128); break
        if stop == 'O' and n == W0+16: dump(RA, 128); break
        if n in (16, S0, P0, W0-8, W0, W0+32, W0+128): stamp()
        if pre_mf[n]: k("\n".join(pre_mf[n]))
        k(mf[n])
        if n in bar:
            st, iss = bar[n]
            lg = " lgkmcnt(0)" if st == 30 else (" lgkmcnt(2)" if st == 1 else "")
            assert not any(t == ('d', st) for it in pend for _, t in it)
            if exp in ('nodma', 'nowait'): k(f"s_waitcnt vmcnt(63){lg}\ns_barrier")
            else: k(f"s_waitcnt vmcnt({wait_stage(st)}){lg}\ns_barrier")
            for s_ in iss: pend += dma_items(s_)
        if n == X1: k("s_waitcnt lgkmcnt(0)\ns_barrier")
        if n == X2:
            k("s_waitcnt lgkmcnt(2)\ns_barrier")
            pend += dma_items(33) + dma_items(34)
        if n+NR < N: k("\n".join(rd[n+NR]))
        for t in fill[n]:
            if t.startswith('buffer_store'):
                if exp != 'nost': vm(t, 's')
            else: k(t)
        sp = sps[0] if n < S0 else sps[1] if n < P0 else sps[2] if n < W0 else sps[3]
        if len(pend) > 8: sp = 1
        if pend and n % sp == (sp-1 if exp == 'pair' else 0):
            it = pend.pop(0)
            if exp == 'nodma': vmq.extend(t for _, t in it if t)
            else: emit_item(it)
    if not stop:
        for t in wepi(6)[:-1]: k(t)
    if stamps:
        k("s_waitcnt vmcnt(0)"); stamp()
        srd(k, 52, 6, 7, 64 << 20, WS_DBG)
        k(f"s_lshl_b32 s5, s2, 2\ns_add_u32 s5, s5, s{sW}\ns_lshl_b32 s5, s5, 6\nv_mov_b32 v{T0}, 0\ns_waitcnt lgkmcnt(0)\ns_mov_b64 exec, 1")
        for i in range(nst[0]):
            k(f"s_sub_u32 s4, s{60+2*i}, s60\nv_mov_b32 v{T0+1}, s4\nbuffer_store_dword v{T0+1}, v{T0}, s[52:55], s5 offen offset:{4*i}")
    k(f"{name}_end:")
    return k
```

```python
from common import *
ZB = 2048*1792
KB = 0.7978845608028654; KK = 0.044715

def red8(k, xs, ts):
    for x in xs: k(f"v_add_f32_dpp v{x}, v{x}, v{x} row_ror:8 {DP}")
    for sw in ("v_permlane16_swap_b32", "v_permlane32_swap_b32"):
        for x, t in zip(xs, ts): k(f"v_mov_b32 v{t}, v{x}")
        for x, t in zip(xs, ts): k(f"{sw} v{x}, v{t}")
        for x, t in zip(xs, ts): k(f"v_add_f32 v{x}, v{x}, v{t}")
def swap32_add(x, t):
    return [f"v_mov_b32 v{t}, v{x}", "s_nop 1", f"v_permlane32_swap_b32 v{x}, v{t}", f"v_add_f32 v{x}, v{x}, v{t}"]
def rstd_ops(q, m):
    return [f"v_cvt_pk_bf16_f32 v{q}, 0, v{q}", f"v_cvt_pk_bf16_f32 v{m}, 0, v{m}", f"v_add_f32 v{q}, {hx(1e-5)}, v{q}",
            f"v_cvt_pk_bf16_f32 v{q}, 0, v{q}", f"v_sqrt_f32 v{q}, v{q}", f"v_cvt_pk_bf16_f32 v{q}, 0, v{q}", f"v_rcp_f32 v{q}, v{q}"]

def gen_p1(name):
    k = Kern(name)
    k(f"""
    s_load_dwordx2 s[4:5], s[0:1], 0
    s_load_dwordx2 s[6:7], s[0:1], 112
    s_mov_b32 s30, 0xffff0000
    s_cmp_ge_u32 s2, 256
    s_cbranch_scc1 {name}_end
    v_lshrrev_b32 v1, 3, v0
    v_and_b32 v2, 7, v0
    v_lshlrev_b32 v3, 9, v1
    v_lshl_add_u32 v3, v2, 4, v3
    v_lshlrev_b32 v4, 4, v1
    v_mul_u32_u24 v5, 896, v2
    v_add_u32 v5, v5, v4
    s_lshr_b32 s3, s2, 2
    s_mul_i32 s3, s3, 28672
    s_and_b32 s31, s2, 3
    s_lshl_b32 s31, s31, 7
    s_add_u32 s3, s3, s31
    s_add_u32 s31, s3, {WS_PART}
    s_mul_i32 s32, s2, {8*896}
    s_waitcnt lgkmcnt(0)
    """)
    srd(k, 8, 6, 7, WS_Z1)
    srd(k, 12, 4, 5, XB)
    for g in range(8):
        k(f"buffer_load_dwordx4 v[{8+4*g}:{11+4*g}], v3, s[8:11], s31 offen")
        if g < 7: k(f"s_add_u32 s31, s31, {XB}")
    k(f"""buffer_load_dwordx4 v[40:43], v5, s[12:15], s32 offen
    buffer_load_dwordx4 v[44:47], v4, s[8:11], 0 offen offset:{WS_MOD+2*896}
    buffer_load_dwordx4 v[48:51], v4, s[8:11], 0 offen offset:{WS_MOD+3*896}
    buffer_load_dwordx4 v[52:55], v4, s[8:11], 0 offen offset:{WS_MOD+4*896}
    v_lshrrev_b32 v6, 6, v0
    v_lshlrev_b32 v6, 6, v6
    v_lshl_add_u32 v6, v2, 3, v6
    v_lshlrev_b32 v7, 3, v2
    s_add_u32 s33, s3, {WS_X1}
    s_add_u32 s34, s3, {WS_H2}
    """)
    A = 56; T = 64
    unpack(k, A, 8, 4, 30)
    for g in range(1, 8):
        unpack(k, T, 8+4*g, 4, 30)
        for j in range(4): k(f"v_pk_add_f32 v[{A+2*j}:{A+2*j+1}], v[{A+2*j}:{A+2*j+1}], v[{T+2*j}:{T+2*j+1}]")
    unpack(k, T, 44, 4, 30); unpack(k, 8, 40, 4, 30)
    for j in range(8):
        rnd(k, A+j, A+j); k(f"v_mul_f32 v{A+j}, v{A+j}, v{T+j}"); rnd(k, A+j, A+j)
        k(f"v_add_f32 v{A+j}, v{A+j}, v{8+j}"); rnd(k, A+j, A+j)
    for j in range(4): k(f"v_cvt_pk_bf16_f32 v{16+j}, v{A+2*j}, v{A+2*j+1}")
    k(f"buffer_store_dwordx4 v[16:19], v3, s[8:11], s33 offen sc1")
    k(f"v_add_f32 v20, v{A}, v{A+1}")
    for j in range(2, 8): k(f"v_add_f32 v20, v20, v{A+j}")
    red8(k, [20], [22])
    k(f"v_mul_f32 v20, {hx(1/64)}, v20")
    for j in range(8):
        k(f"v_sub_f32 v22, v{A+j}, v20")
        k("v_mul_f32 v21, v22, v22" if j == 0 else "v_fmac_f32 v21, v22, v22")
    red8(k, [21], [22])
    k("ds_write_b64 v6, v[20:21]")
    unpack(k, 24, 52, 4, 30); unpack(k, 32, 48, 4, 30)
    for j in range(8): k(f"v_add_f32 v{24+j}, 1.0, v{24+j}"); rnd(k, 24+j, 24+j)
    k("s_waitcnt lgkmcnt(0)\ns_barrier")
    for w in range(7): k(f"ds_read_b64 v[{T+2*w}:{T+2*w+1}], v7 offset:{64*w}")
    k(f"v_add_f32 v20, v{T}, v{T+2}\nv_add_f32 v21, v{T+1}, v{T+3}")
    for w in range(2, 7): k(f"v_add_f32 v20, v20, v{T+2*w}\nv_add_f32 v21, v21, v{T+2*w+1}")
    k(f"v_mul_f32 v20, {hx(1/7)}, v20")
    for w in range(7):
        k(f"v_sub_f32 v22, v{T+2*w}, v20")
        k("v_mul_f32 v23, v22, v22" if w == 0 else "v_fmac_f32 v23, v22, v22")
    k(f"v_fmac_f32 v21, {hx(64.0)}, v23\nv_mul_f32 v21, {hx(1/448)}, v21")
    k("\n".join(rstd_ops(21, 20)))
    for j in range(8):
        k(f"v_sub_f32 v{A+j}, v{A+j}, v20"); rnd(k, A+j, A+j)
        k(f"v_mul_f32 v{A+j}, v{A+j}, v21"); rnd(k, A+j, A+j)
        k(f"v_mul_f32 v{A+j}, v{A+j}, v{24+j}"); rnd(k, A+j, A+j)
        k(f"v_add_f32 v{A+j}, v{A+j}, v{32+j}")
    for j in range(4): k(f"v_cvt_pk_bf16_f32 v{40+j}, v{A+2*j}, v{A+2*j+1}")
    k(f"buffer_store_dwordx4 v[40:43], v3, s[8:11], s34 offen sc1\n{name}_end:")
    return k

def lanefields(k):
    k(f"""
    v_lshrrev_b32 v24, 5, v1
    v_and_b32 v25, 31, v1
    v_bfe_u32 v26, v1, 2, 2
    v_bfe_u32 v27, v1, 4, 1
    v_and_b32 v28, 3, v1
    v_and_b32 v31, 1, v28
    v_lshlrev_b32 v31, 1, v31
    v_lshrrev_b32 v28, 1, v28
    v_or_b32 v28, v28, v31
    v_lshlrev_b32 v29, 5, v27
    v_lshl_add_u32 v29, v28, 3, v29
    """)

class VQ:
    def __init__(s, k): s.k = k; s.q = []
    def __call__(s, text, tag): s.k(text); s.q.append(tag)
    def n(s, tag):
        last = max(i for i, t in enumerate(s.q) if t == tag)
        return sum(1 for t in s.q[last+1:] if t != 's')

def gelu_ops(x, t, sC1, sC2, final_round):
    o = [f"v_cvt_pk_bf16_f32 v{x}, 0, v{x}", f"v_mul_f32 v{t}, v{x}, v{x}", f"v_fma_f32 v{t}, v{t}, s{sC2}, v{sC1}",
         f"v_mul_f32 v{t}, v{t}, v{x}", f"v_exp_f32 v{t}, v{t}", f"v_add_f32 v{t}, 1.0, v{t}", f"v_rcp_f32 v{t}, v{t}",
         f"v_mul_f32 v{x}, v{x}, v{t}"]
    if final_round: o.append(f"v_cvt_pk_bf16_f32 v{x}, 0, v{x}")
    return o
def interleave(*seqs):
    o = []
    for i in range(max(len(s) for s in seqs)):
        for s in seqs:
            if i < len(s): o.append(s[i])
    return o

AH = 256; AR = 256+112; NR = 6; NRING = 8
def gemm_emit(k, vm, mf, rd, fill, bar):
    N = len(mf)
    for n in range(NR):
        if n-NR in bar: k(bar[n-NR]())
        k("\n".join(rd[n]))
    for n in range(N):
        k(mf[n])
        if n in bar: k(bar[n]())
        if n+NR < N: k("\n".join(rd[n+NR]))
        for t in fill.get(n, []):
            if t.startswith('buffer_store'): vm(t, 's')
            else: k(t)

def gen_p2(name):
    k = Kern(name); vm = VQ(k)
    k(f"""
    s_load_dwordx2 s[4:5], s[0:1], 48
    s_load_dwordx2 s[6:7], s[0:1], 112
    v_and_b32 v1, 63, v0
    v_lshrrev_b32 v22, 6, v0
    s_cmp_ge_u32 s2, 224
    s_cbranch_scc1 {name}_end
    v_readfirstlane_b32 s40, v22
    s_and_b32 s3, s2, 7
    s_lshr_b32 s41, s2, 3
    s_cmp_ge_u32 s41, 14
    s_cselect_b32 s42, 1, 0
    s_mul_i32 s43, s42, 14
    s_sub_u32 s41, s41, s43
    s_lshl_b32 s3, s3, 1
    s_add_u32 s3, s3, s42
    s_lshl_b32 s3, s3, 2
    s_add_u32 s3, s3, s40
    s_mul_i32 s44, s3, 28672
    s_add_u32 s44, s44, {WS_H2}
    s_mul_i32 s45, s40, {8*3584}
    s_lshl_b32 s42, s41, 7
    s_add_u32 s45, s45, s42
    s_lshl_b32 s46, s40, 10
    s_mul_i32 s47, s3, 57344
    s_lshl_b32 s42, s41, 12
    s_add_u32 s47, s47, s42
    s_add_u32 s48, s47, {WS_Z2}
    s_add_u32 s47, s47, {WS_Z1}
    s_mul_i32 s49, s3, 3584
    s_add_u32 s49, s49, {WS_ST}
    s_lshl_b32 s42, s41, 8
    s_add_u32 s50, s49, s42
    v_lshlrev_b32 v2, 4, v1
    v_lshrrev_b32 v3, 3, v1
    v_mul_u32_u24 v3, 3584, v3
    v_bfe_u32 v4, v1, 4, 1
    v_lshlrev_b32 v4, 2, v4
    v_and_b32 v5, 7, v1
    v_xor_b32 v4, v4, v5
    v_lshl_add_u32 v3, v4, 4, v3
    s_waitcnt lgkmcnt(0)
    """)
    srd(k, 8, 6, 7, WS_U)
    srd(k, 12, 4, 5, 448*3584)
    def hload(t):
        if t % 4 == 0 and t: k("s_add_u32 s44, s44, 4096")
        vm(f"buffer_load_dwordx4 {r(AH+4*t,4)}, v2, s[8:11], s44 offen offset:{(t%4)*1024}", 'h')
    def dma(part, half):
        for j in range(7):
            i = half*28 + 4*j
            k(f"s_add_u32 m0, s46, {part*57344+i*1024}\ns_add_u32 s42, s45, {i*8*3584+(1792 if part == 0 else 0)}")
            vm(f"buffer_load_dwordx4 v3, s[12:15], s42 offen lds", (part, half))
    dma(0, 0)
    for t in range(14): hload(t)
    dma(0, 1)
    for t in range(14, 28): hload(t)
    dma(1, 0); dma(1, 1)
    lanefields(k)
    k(f"""
    v_lshl_add_u32 v30, v24, 3, v26
    v_lshl_add_u32 v6, v30, 7, v29
    v_lshrrev_b32 v31, 1, v26
    v_lshl_add_u32 v6, v31, 6, v6
    v_xor_b32 v7, 64, v6
    v_add_u32 v8, 57344, v6
    v_add_u32 v9, 57344, v7
    v_lshlrev_b32 v10, 3, v25
    v_mul_u32_u24 v11, {7*256}, v24
    v_add_u32 v11, v11, v10
    v_mov_b32 v12, {hx(-2*KB*LOG2E)}
    s_mov_b32 s51, {hx(-2*KB*LOG2E*KK)}
    """)
    Z2 = 32; Z1 = 64
    mf = []; rd = []
    for part in range(2):
        for t in range(28):
            for ft in range(2):
                n = len(mf); A = AR+4*(n % NRING); D = (Z2 if part == 0 else Z1)+16*ft
                mf.append(f"v_mfma_f32_32x32x16_bf16 {r(D,16)}, {r(A,4)}, {r(AH+4*t,4)}, {r(D,16) if t else 0}")
                rd.append([f"ds_read_b64_tr_b16 {r(A+2*e,2)}, v{6+2*part+ft} offset:{t*2048+e*512}" for e in range(2)])
    bar = {}
    for part in range(2):
        for half in range(2):
            bar[part*56+half*28-NR] = (lambda p=part, h=half: f"s_waitcnt vmcnt({vm.n((p, h))})\ns_barrier")
    seq = []
    for i in range(0, 32, 2): seq += interleave(gelu_ops(Z2+i, 14, 12, 51, True), gelu_ops(Z2+i+1, 15, 12, 51, True))
    seq += [f"v_add_f32 v16, v{Z2}, v{Z2+1}"] + [f"v_add_f32 v16, v16, v{Z2+i}" for i in range(2, 32)]
    seq += swap32_add(16, 14) + [f"v_mul_f32 v16, {hx(1/64)}, v16"]
    for i in range(32):
        seq += [f"v_sub_f32 v14, v{Z2+i}, v16", "v_mul_f32 v17, v14, v14" if i == 0 else "v_fmac_f32 v17, v14, v14"]
    seq += swap32_add(17, 14)
    seq += ["s_mov_b32 exec_hi, 0", f"buffer_store_dwordx2 v[16:17], v10, s[8:11], s50 offen sc1", "s_mov_b32 exec_hi, -1"]
    fill = {}
    per = 6; g = 59
    while seq and g < 111:
        fill[g] = seq[:per]; seq = seq[per:]; g += 1
    if any('exec' in x for f in fill.values() for x in f): raise Exception("exec change amid MFMA")
    gemm_emit(k, vm, mf, rd, fill, bar)
    for t in seq:
        if t.startswith('buffer_store'): vm(t, 's')
        else: k(t)
    for q in range(4):
        b = Z1+8*q
        for i in range(0, 8, 2): k("\n".join(interleave(gelu_ops(b+i, 14, 12, 51, False), gelu_ops(b+i+1, 15, 12, 51, False))))
        for i in range(4): k(f"v_cvt_pk_bf16_f32 v{b+i}, v{b+2*i}, v{b+2*i+1}")
        k(f"buffer_store_dwordx4 v[{b}:{b+3}], v2, s[8:11], s47 offen offset:{q*1024} sc1")
    S = 96
    L = k.lab()
    k(f"s_mov_b32 s52, 0\n{L}:")
    for c in range(7): k(f"buffer_load_dwordx2 v[{S+2*c}:{S+2*c+1}], v11, s[8:11], s49 offen offset:{256*c} sc1")
    k("s_waitcnt vmcnt(0)")
    k(f"v_cmp_ne_u32 vcc, -1, v{S}")
    for c in range(1, 14): k(f"v_cmp_ne_u32 s[54:55], -1, v{S+c}\ns_and_b64 vcc, vcc, s[54:55]")
    k(f"""s_add_u32 s52, s52, 1
    s_cmp_eq_u64 vcc, -1
    s_cbranch_scc1 {L}_ok
    s_cmp_lt_u32 s52, 0x40000
    s_cbranch_scc1 {L}
    {L}_ok:""")
    k(f"v_add_f32 v16, v{S}, v{S+2}\nv_add_f32 v17, v{S+1}, v{S+3}")
    for c in range(2, 7): k(f"v_add_f32 v16, v16, v{S+2*c}\nv_add_f32 v17, v17, v{S+2*c+1}")
    k("\n".join(swap32_add(16, 14))); k(f"v_mul_f32 v16, {hx(1/14)}, v16")
    for c in range(7):
        k(f"v_sub_f32 v14, v{S+2*c}, v16")
        k("v_mul_f32 v15, v14, v14" if c == 0 else "v_fmac_f32 v15, v14, v14")
    k(f"v_fmac_f32 v17, {hx(64.0)}, v15")
    k("\n".join(swap32_add(17, 14))); k(f"v_mul_f32 v17, {hx(1/896)}, v17")
    k("\n".join(rstd_ops(17, 16)))
    for q in range(4):
        b = Z2+8*q
        for i in range(8):
            k(f"v_sub_f32 v{b+i}, v{b+i}, v16"); rnd(k, b+i, b+i); k(f"v_mul_f32 v{b+i}, v{b+i}, v17")
        for i in range(4): k(f"v_cvt_pk_bf16_f32 v{b+i}, v{b+2*i}, v{b+2*i+1}")
        k(f"buffer_store_dwordx4 v[{b}:{b+3}], v2, s[8:11], s48 offen offset:{q*1024} sc1")
    k(f"{name}_end:")
    return k

def gen_p3(name):
    k = Kern(name); vm = VQ(k)
    SL = 49152
    k(f"""
    s_load_dwordx4 s[16:19], s[0:1], 56
    s_load_dwordx2 s[6:7], s[0:1], 112
    v_and_b32 v1, 63, v0
    v_lshrrev_b32 v22, 6, v0
    s_cmp_ge_u32 s2, 224
    s_cbranch_scc1 {name}_end
    v_readfirstlane_b32 s40, v22
    s_and_b32 s3, s2, 7
    s_lshr_b32 s41, s2, 3
    s_mul_i32 s42, s41, 9363
    s_lshr_b32 s42, s42, 16
    s_mul_i32 s43, s42, 7
    s_sub_u32 s41, s41, s43
    s_and_b32 s43, s3, 1
    s_mul_i32 s43, s43, 7
    s_add_u32 s41, s41, s43
    s_lshr_b32 s3, s3, 1
    s_lshl_b32 s3, s3, 2
    s_add_u32 s3, s3, s42
    s_lshl_b32 s3, s3, 2
    s_add_u32 s3, s3, s40
    s_lshl_b32 s44, s3, 17
    s_mul_i32 s45, s40, 57344
    s_lshl_b32 s42, s41, 12
    s_add_u32 s45, s45, s42
    s_add_u32 s45, s45, {WS_Z2}
    s_lshl_b32 s46, s40, 12
    s_lshl_b32 s47, s40, 13
    s_add_u32 s47, s47, 16384
    s_mul_i32 s48, s3, 57344
    s_add_u32 s48, s48, s42
    s_add_u32 s49, s48, {WS_U}
    s_add_u32 s48, s48, {WS_Z1}
    s_lshl_b32 s50, s3, 6
    s_mov_b32 s30, 0xffff0000
    """)
    lanefields(k)
    k(f"""
    v_lshlrev_b32 v30, 2, v24
    v_xor_b32 v30, v30, v25
    v_lshlrev_b32 v30, 4, v30
    v_lshl_add_u32 v2, v24, 9, v30
    v_xor_b32 v3, 128, v2
    v_lshrrev_b32 v30, 4, v1
    v_and_b32 v31, 15, v1
    v_xor_b32 v31, v31, v30
    v_lshlrev_b32 v31, 4, v31
    v_lshl_add_u32 v4, v30, 12, v31
    v_xor_b32 v5, 64, v4
    v_xor_b32 v6, 128, v4
    v_xor_b32 v7, 192, v4
    v_add_u32 v5, {15360}, v5
    v_add_u32 v6, {2*15360}, v6
    v_add_u32 v7, {3*15360}, v7
    s_waitcnt lgkmcnt(0)
    """)
    srd(k, 8, 6, 7, WS_U+ZB)
    srd(k, 12, 16, 17, 2048*4096)
    srd(k, 20, 18, 19, 4096)
    def dma(st):
        sl = (st % 3)*SL; it = []
        for ii in range(4):
            pre = [f"s_add_u32 m0, s46, {sl}", f"s_add_u32 s42, s45, {st*4*57344}"] if ii == 0 else []
            it.append(pre + [f"buffer_load_dwordx4 v{2+(ii&1)}, s[8:11], s42 offen offset:{ii*1024} lds"])
        for grp in range(2):
            for ii in range(4):
                pre = [f"s_add_u32 m0, s47, {sl+grp*4096}", f"s_add_u32 s42, s44, {st*256+grp*16*4096}"] if ii == 0 else []
                it.append(pre + [f"buffer_load_dwordx4 v{4+ii}, s[12:15], s42 offen offset:{ii*1024} lds"])
        return [(x, st) for x in it]
    def emit(it):
        x, st = it
        for t in x[:-1]: k(t)
        vm(x[-1], st)
    for st in range(2):
        for it in dma(st): emit(it)
    ZR = 64
    k(f"v_lshlrev_b32 v8, 4, v1\nv_lshlrev_b32 v9, 1, v25")
    for q in range(4): vm(f"buffer_load_dwordx4 v[{ZR+4*q}:{ZR+4*q+3}], v8, s[8:11], s48 offen offset:{q*1024}", 'l')
    vm(f"buffer_load_ushort v80, v9, s[20:23], s50 offen", 'l')
    k(f"""
    v_lshrrev_b32 v30, 1, v28
    v_lshl_add_u32 v30, v27, 1, v30
    v_lshl_add_u32 v31, v24, 3, v26
    v_lshlrev_b32 v23, 2, v30
    v_xor_b32 v31, v31, v23
    v_lshlrev_b32 v31, 4, v31
    v_lshl_add_u32 v10, v30, 9, v31
    v_and_b32 v31, 1, v28
    v_lshl_add_u32 v10, v31, 3, v10
    v_and_b32 v31, 15, v25
    v_xor_b32 v31, v31, v24
    v_lshlrev_b32 v31, 4, v31
    v_lshl_add_u32 v11, v25, 8, v31
    v_add_u32 v11, s47, v11
    """)
    XA = 12; XBB = 14
    G = 32
    ARA = 256; ARB = 256+32
    mf = []; rd = []
    for st in range(16):
        sl = (st % 3)*SL
        for kp in range(8):
            for ft in range(2):
                n = len(mf); A = ARA+4*(n % 8); B = ARB+4*((n >> 1) % 4); D = G+16*ft
                mf.append(f"v_mfma_f32_32x32x16_bf16 {r(D,16)}, {r(A,4)}, {r(B,4)}, {r(D,16) if n > 1 else 0}")
                x = []
                if ft == 0:
                    if kp == 0: x += [f"v_add_u32 v{XA}, {sl}, v10", f"v_xor_b32 v{XA+1}, 64, v{XA}", f"v_add_u32 v22, {sl}, v11"]
                    x += [f"v_xor_b32 v{XBB+kp}, {32*kp}, v22", f"ds_read_b128 {r(B,4)}, v{XBB+kp}"]
                x += [f"ds_read_b64_tr_b16 {r(A+2*e,2)}, v{XA+e} offset:{(kp>>1)*4096+ft*2048+(kp&1)*256}" for e in range(2)]
                rd.append(x)
    N = len(mf); pend = []
    k(f"s_waitcnt vmcnt({vm.n(0)})\ns_barrier")
    pend += dma(2)
    for n in range(NR): k("\n".join(rd[n]))
    for n in range(N):
        k(mf[n])
        if (n+NR) % 16 == 0 and n+NR < N:
            st = (n+NR)//16
            while pend: emit(pend.pop(0))
            k(f"s_waitcnt vmcnt({vm.n(st)}) lgkmcnt(0)\ns_barrier")
            if st+2 < 16: pend += dma(st+2)
        if n+NR < N: k("\n".join(rd[n+NR]))
        if pend: emit(pend.pop(0))
    k("v_lshlrev_b32 v80, 16, v80")
    for q in range(4):
        b = G+8*q
        unpack(k, 84, ZR+4*q, 4, 30)
        for i in range(8):
            rnd(k, b+i, b+i); k(f"v_add_f32 v{b+i}, v{b+i}, v80"); rnd(k, b+i, b+i); k(f"v_mul_f32 v{b+i}, v{b+i}, v{84+i}")
        for i in range(4): k(f"v_cvt_pk_bf16_f32 v{b+i}, v{b+2*i}, v{b+2*i+1}")
        k(f"buffer_store_dwordx4 v[{b}:{b+3}], v8, s[8:11], s49 offen offset:{q*1024} sc1")
    k(f"{name}_end:")
    return k

def gen_p4(name):
    k = Kern(name); vm = VQ(k)
    k(f"""
    s_load_dwordx2 s[4:5], s[0:1], 72
    s_load_dwordx2 s[6:7], s[0:1], 112
    s_load_dwordx2 s[16:17], s[0:1], 96
    v_and_b32 v1, 63, v0
    v_lshrrev_b32 v22, 6, v0
    s_cmp_ge_u32 s2, 224
    s_cbranch_scc1 {name}_end
    v_readfirstlane_b32 s40, v22
    s_and_b32 s3, s2, 7
    s_lshr_b32 s41, s2, 3
    s_mul_i32 s42, s41, 9363
    s_lshr_b32 s42, s42, 16
    s_mul_i32 s43, s42, 7
    s_sub_u32 s41, s41, s43
    s_lshl_b32 s3, s3, 2
    s_add_u32 s3, s3, s42
    s_lshl_b32 s3, s3, 1
    s_and_b32 s42, s40, 1
    s_add_u32 s3, s3, s42
    s_lshr_b32 s43, s40, 1
    s_mul_i32 s44, s3, 57344
    s_mul_i32 s42, s43, 28672
    s_add_u32 s44, s44, s42
    s_add_u32 s44, s44, {WS_U}
    s_mul_i32 s45, s40, {8*896}
    s_lshl_b32 s42, s41, 7
    s_add_u32 s45, s45, s42
    s_lshl_b32 s46, s40, 10
    s_lshl_b32 s47, s41, 3
    s_lshl_b32 s42, s43, 2
    s_add_u32 s47, s47, s42
    s_lshl_b32 s48, s47, 9
    s_mul_i32 s42, s3, 28672
    s_add_u32 s48, s48, s42
    s_add_u32 s48, s48, {WS_X1}
    s_lshl_b32 s47, s47, 4
    s_mul_i32 s49, s3, {32*896}
    s_add_u32 s49, s49, s47
    s_mov_b32 s30, 0xffff0000
    v_lshlrev_b32 v2, 4, v1
    v_lshrrev_b32 v3, 3, v1
    v_mul_u32_u24 v3, 896, v3
    v_bfe_u32 v4, v1, 4, 1
    v_lshlrev_b32 v4, 2, v4
    v_and_b32 v5, 7, v1
    v_xor_b32 v4, v4, v5
    v_lshl_add_u32 v3, v4, 4, v3
    s_waitcnt lgkmcnt(0)
    """)
    srd(k, 8, 6, 7, WS_U+ZB)
    srd(k, 12, 4, 5, 896*896)
    srd(k, 20, 16, 17, XB)
    def hload(t):
        if t % 4 == 0 and t: k("s_add_u32 s44, s44, 4096")
        vm(f"buffer_load_dwordx4 {r(AH+4*t,4)}, v2, s[8:11], s44 offen offset:{(t%4)*1024}", 'h')
    def dma(half):
        for part in range(2):
            for j in range(7):
                i = part*56 + half*28 + 4*j
                k(f"s_add_u32 m0, s46, {i*1024}\ns_add_u32 s42, s45, {i*8*896}")
                vm(f"buffer_load_dwordx4 v3, s[12:15], s42 offen lds", half)
    dma(0)
    for t in range(14): hload(t)
    dma(1)
    for t in range(14, 28): hload(t)
    lanefields(k)
    k(f"v_lshlrev_b32 v10, 4, v24")
    XR = 64
    for b in range(2):
        vm(f"buffer_load_dwordx4 v[{XR+4*b}:{XR+4*b+3}], v2, s[8:11], s48 offen offset:{b*1024}", 'l')
        vm(f"buffer_load_dwordx4 v[{XR+8+4*b}:{XR+8+4*b+3}], v10, s[8:11], s47 offen offset:{WS_MOD+5*896-4096+b*32}".replace('s47', 's50'), 'l')
    k.ins.insert(len(k.ins)-4, Inst("s_add_u32 s50, s47, 4096"))
    k(f"""
    v_lshl_add_u32 v30, v24, 3, v26
    v_lshl_add_u32 v6, v30, 7, v29
    v_lshrrev_b32 v31, 1, v26
    v_xor_b32 v31, s43, v31
    v_lshl_add_u32 v6, v31, 6, v6
    s_mul_i32 s42, s43, 57344
    v_add_u32 v6, s42, v6
    v_xor_b32 v7, 64, v6
    s_lshl_b32 s42, s40, 12
    s_add_u32 s42, s42, 114688
    v_add_u32 v8, s42, v2
    v_xor_b32 v9, 8192, v8
    v_mul_u32_u24 v11, 896, v25
    v_add_u32 v11, v11, v10
    """)
    G = 32
    mf = []; rd = []
    for t in range(28):
        for ft in range(2):
            n = len(mf); A = AR+4*(n % NRING); D = G+16*ft
            mf.append(f"v_mfma_f32_32x32x16_bf16 {r(D,16)}, {r(A,4)}, {r(AH+4*t,4)}, {r(D,16) if t else 0}")
            rd.append([f"ds_read_b64_tr_b16 {r(A+2*e,2)}, v{6+ft} offset:{t*2048+e*512}" for e in range(2)])
    bar = {h*28-NR: (lambda h=h: f"s_waitcnt vmcnt({vm.n(h)})\ns_barrier") for h in range(2)}
    gemm_emit(k, vm, mf, rd, {}, bar)
    for q in range(4): k(f"ds_write_b128 v8, v[{G+16+4*q}:{G+19+4*q}] offset:{q*1024}")
    unpack(k, 80, XR, 8, 30); unpack(k, 96, XR+8, 8, 30)
    k("s_waitcnt lgkmcnt(0)\ns_barrier")
    for q in range(4): k(f"ds_read_b128 v[{G+16+4*q}:{G+19+4*q}], v9 offset:{q*1024}")
    for b in range(2):
        for i in range(8*b, 8*b+8):
            k(f"v_add_f32 v{G+i}, v{G+i}, v{G+16+i}"); rnd(k, G+i, G+i)
            k(f"v_mul_f32 v{G+i}, v{G+i}, v{96+i}"); rnd(k, G+i, G+i)
            k(f"v_add_f32 v{G+i}, v{G+i}, v{80+i}")
        for i in range(4): k(f"v_cvt_pk_bf16_f32 v{G+8*b+i}, v{G+8*b+2*i}, v{G+8*b+2*i+1}")
        k(f"buffer_store_dwordx4 v[{G+8*b}:{G+8*b+3}], v11, s[20:23], s49 offen offset:{b*32}")
    k(f"{name}_end:")
    return k
```

```python
from asmlib import *
WS_MOD  = 0
WS_XN   = 0x10000
WS_PART = 0x200000
WS_X1   = 0x1000000
WS_H2   = 0x1200000
WS_Z1   = 0x1400000
WS_Z2   = 0x1800000
WS_ST   = 0x1C00000
WS_F1   = WS_ST + 0x38000
WS_F2   = WS_F1 + 0x1000
WS_F4   = WS_F1 + 0x2000
WS_F5   = WS_F1 + 0x3000
WS_U    = 0x1D00000
WS_DBG  = 0x4000000
XB = 2048*896
LOG2E = 1.4426950408889634
import struct
def f2u(x): return struct.unpack('<I', struct.pack('<f', x))[0]
def hx(x): return hex(f2u(x))

def srd(k, d, lo, hi, n, off=0):
    if off:
        k(f"s_add_u32 s{d}, s{lo}, {off}\ns_addc_u32 s{d+1}, s{hi}, 0")
    else:
        k(f"s_mov_b32 s{d}, s{lo}\ns_mov_b32 s{d+1}, s{hi}")
    k(f"s_mov_b32 s{d+2}, {n}\ns_mov_b32 s{d+3}, 0x20000")

def unpack(k, dst, src, n, sM):
    for i in range(n):
        k(f"v_lshlrev_b32 v{dst+2*i}, 16, v{src+i}\nv_and_b32 v{dst+2*i+1}, s{sM}, v{src+i}")

DP = "row_mask:0xf bank_mask:0xf"
def wsum(k, xs, ts, lo=True):
    for pat in ("quad_perm:[1,0,3,2]", "quad_perm:[2,3,0,1]", "row_half_mirror", "row_mirror"):
        for x in xs: k(f"v_add_f32_dpp v{x}, v{x}, v{x} {pat} {DP}")
    for sw in ("v_permlane16_swap_b32", "v_permlane32_swap_b32"):
        for x, t in zip(xs, ts): k(f"v_mov_b32 v{t}, v{x}")
        for x, t in zip(xs, ts): k(f"{sw} v{x}, v{t}")
        for x, t in zip(xs, ts): k(f"v_add_f32 v{x}, v{x}, v{t}")
def rnd(k, d, s_): k(f"v_cvt_pk_bf16_f32 v{d}, 0, v{s_}")

import os
STAMP = bool(int(os.environ.get('STAMP', '0')))
def stamp(k):
    if not STAMP: return
    n = getattr(k, 'nst', 0)
    if n == 0: k('s_memrealtime s[58:59] ; stamp')
    k(f'{os.environ.get("CLK", "s_memtime")} s[{60+2*n}:{61+2*n}] ; stamp'); k.nst = n+1
    assert n < 10
def stamp_end(k, idx):
    if not STAMP: return
    k("s_waitcnt vmcnt(0)"); stamp(k)
    k('s_memrealtime s[56:57] ; stamp')
    srd(k, 92, 6, 7, 1 << 20, WS_DBG + idx*65536*2)
    k(f"v_lshrrev_b32 v1, 6, v0\ns_nop 1\nv_readfirstlane_b32 s5, v1\ns_lshl_b32 s4, s2, 3\ns_add_u32 s5, s5, s4\ns_lshl_b32 s5, s5, 6\nv_mov_b32 v1, 0\ns_waitcnt lgkmcnt(0)\ns_mov_b64 exec, 1")
    k(f"v_mov_b32 v2, s58\nbuffer_store_dword v2, v1, s[92:95], s5 offen\nv_mov_b32 v3, s56\nbuffer_store_dword v3, v1, s[92:95], s5 offen offset:4")
    for i in range(1, k.nst):
        k(f"s_sub_u32 s4, s{60+2*i}, s60\nv_mov_b32 v{3+i}, s4\nbuffer_store_dword v{3+i}, v1, s[92:95], s5 offen offset:{4+4*i}")
```

```python
from common import *

def gen_k0(name, code_lo=None, code_hi=None, lin=False, wm=0):
    k = Kern(name)
    stamp(k)
    k(f"""
    s_load_dwordx2 s[4:5], s[0:1], 0
    s_load_dwordx2 s[6:7], s[0:1], 112
    s_load_dwordx2 s[28:29], s[0:1], 24
    s_load_dwordx4 s[32:35], s[0:1], 80
    s_mov_b32 s30, 0xffff0000
    v_and_b32 v1, 63, v0
    v_lshrrev_b32 v2, 6, v0
    s_cmp_ge_u32 s2, 298
    s_cbranch_scc1 {name}_end
    s_cmp_lt_u32 s2, 42
    s_cbranch_scc1 {name}_mod
    """)
    k(f"""
    s_sub_u32 s3, s2, 42
    s_mul_i32 s31, s3, {8*896}
    v_mul_u32_u24 v3, {2*896}, v2
    v_lshl_add_u32 v3, v1, 4, v3
    v_cmp_gt_u32 vcc, 56, v1
    v_mov_b32 v4, 0x7ffffff0
    v_cndmask_b32 v3, v4, v3, vcc
    s_waitcnt lgkmcnt(0)
    """)
    srd(k, 8, 4, 5, XB)
    srd(k, 12, 6, 7, XB, WS_XN)
    srd(k, 16, 28, 29, 448*8192)
    k(f"""
    buffer_load_dwordx4 v[8:11], v3, s[8:11], s31 offen
    buffer_load_dwordx4 v[12:15], v3, s[8:11], s31 offen offset:896
    s_lshr_b32 s36, s3, 3
    s_and_b32 s37, s2, 7
    s_mul_i32 s38, s36, {14*8192}
    s_lshl_b32 s37, s37, 10
    s_add_u32 s38, s38, s37
    v_lshrrev_b32 v5, 4, v0
    v_lshlrev_b32 v5, 13, v5
    v_and_b32 v6, 15, v0
    v_lshl_add_u32 v5, v6, 6, v5
    v_cmp_gt_u32 s[40:41], 224, v0
    v_cndmask_b32 v5, v4, v5, s[40:41]
    LINX
    buffer_load_dword v60, v5, s[16:19], s38 offen
    """.replace("LINX", "s_and_b32 s37, s2, 7\ns_mul_i32 s38, s37, 458752\ns_mul_i32 s37, s36, 14336\ns_add_u32 s38, s38, s37\nv_lshlrev_b32 v5, 6, v0\nv_cndmask_b32 v5, v4, v5, s[40:41]" if lin else "").replace("v_cmp_gt_u32 s[40:41], 224, v0", "s_movk_i32 s39, 224\nv_cmp_gt_u32 s[40:41], s39, v0"))
    if wm:
        srd(k, 44, 34, 35, 448*5376)
        k(f"s_mul_i32 s37, s3, 9408\nv_lshlrev_b32 v5, 4, v0")
        for i in range(3): k(f"buffer_load_dwordx4 v[64:67], v5, s[44:47], s37 offen ; nowait\ns_add_u32 s37, s37, {4096 if i == 0 else 1216}")
    if code_lo:
        k(f"""
        s_getpc_b64 s[20:21]
        {name}_pc:
        s_add_u32 s20, s20, {code_lo}-{name}_pc
        s_addc_u32 s21, s21, 0
        s_mov_b32 s22, {code_hi}-{code_lo}
        s_mov_b32 s23, 0x20000
        s_lshl_b32 s36, s36, 12
        v_lshlrev_b32 v6, 4, v0
        buffer_load_dword v61, v6, s[20:23], s36 offen
        """)
    srd(k, 24, 6, 7, 256*960, WS_ST)
    k(f"""
    s_mul_i32 s36, s3, 960
    v_lshlrev_b32 v6, 4, v0
    v_cmp_gt_u32 s[40:41], 60, v0
    v_cndmask_b32 v6, v4, v6, s[40:41]
    v_mov_b32 v56, -1
    v_mov_b32 v57, -1
    v_mov_b32 v58, -1
    v_mov_b32 v59, -1
    buffer_store_dwordx4 v[56:59], v6, s[24:27], s36 offen sc1
    """)
    stamp(k)
    if STAMP: k(f"s_waitcnt vmcnt({6 if wm else 3})")
    stamp(k)
    X = [16, 24]
    unpack(k, 16, 8, 4, 30); unpack(k, 24, 12, 4, 30)
    S = [32, 33]; T = [34, 35]
    for x, s_ in zip(X, S):
        k(f"v_add_f32 v{s_}, v{x}, v{x+1}")
        for i in range(2, 8): k(f"v_add_f32 v{s_}, v{s_}, v{x+i}")
    wsum(k, S, T)
    M = [36, 37]; Q = [38, 39]
    k(f"s_mov_b32 s39, {hx(1/448)}")
    for s_, m in zip(S, M): k(f"v_mul_f32 v{m}, s39, v{s_}")
    for x, m, q in zip(X, M, Q):
        for i in range(8):
            k(f"v_sub_f32 v40, v{x+i}, v{m}")
            k(f"v_mul_f32 v{q}, v40, v40" if i == 0 else f"v_fmac_f32 v{q}, v40, v40")
        k(f"v_cndmask_b32 v{q}, 0, v{q}, vcc")
    wsum(k, Q, T)
    for x, m, q, p in zip(X, M, Q, (8, 12)):
        k(f"v_mul_f32 v{q}, s39, v{q}")
        rnd(k, q, q); rnd(k, m, m)
        k(f"v_add_f32 v{q}, {hx(1e-5)}, v{q}")
        rnd(k, q, q)
        k(f"v_sqrt_f32 v{q}, v{q}")
        rnd(k, q, q)
        k(f"v_rcp_f32 v{q}, v{q}")
        for i in range(8):
            k(f"v_sub_f32 v{x+i}, v{x+i}, v{m}")
            rnd(k, x+i, x+i)
            k(f"v_mul_f32 v{x+i}, v{x+i}, v{q}")
        for i in range(4): k(f"v_cvt_pk_bf16_f32 v{p+i}, v{x+2*i}, v{x+2*i+1}")
    stamp(k)
    k(f"""
    buffer_store_dwordx4 v[8:11], v3, s[12:15], s31 offen sc1
    buffer_store_dwordx4 v[12:15], v3, s[12:15], s31 offen offset:896 sc1
    s_waitcnt vmcnt(0)
    """)
    stamp_end(k, 0)
    k(f"""
    s_endpgm
    {name}_mod:
    s_waitcnt lgkmcnt(0)
    """)
    srd(k, 8, 32, 33, 896)
    srd(k, 12, 34, 35, 448*5376)
    srd(k, 16, 6, 7, 5376, WS_MOD)
    k(f"""
    v_lshrrev_b32 v3, 3, v0
    v_lshlrev_b32 v4, 1, v3
    v_mul_u32_u24 v3, 5376, v3
    v_and_b32 v5, 7, v0
    v_lshl_add_u32 v3, v5, 4, v3
    s_lshl_b32 s31, s2, 7
    """)
    if wm: k("v_lshlrev_b32 v6, 2, v0\nbuffer_load_dword v8, v6, s[8:11], 0 offen\ns_waitcnt vmcnt(0)")
    for i in range(14):
        k(f"buffer_load_dwordx4 v[{24+4*i}:{27+4*i}], v3, s[12:15], s31 offen")
        if i < 13: k(f"s_add_u32 s31, s31, {32*5376}")
        if i == 0 and not wm: k("v_lshlrev_b32 v6, 2, v0\nbuffer_load_dword v8, v6, s[8:11], 0 offen")
    k.nst = 1
    stamp(k)
    L32 = struct.unpack('<f', struct.pack('<f', LOG2E))[0]
    k(f"s_mov_b32 s36, {hx(-LOG2E)}\ns_mov_b32 s37, {hx(-(LOG2E-L32))}\nv_and_b32 v9, s30, v8\nv_lshlrev_b32 v8, 16, v8")
    stamp(k)
    def silu(c, a, b, d, e):
        return f"""v_mul_f32 v{a}, s36, v{c}
        v_fma_f32 v{b}, s36, v{c}, -v{a}
        v_fmac_f32 v{b}, s37, v{c}
        v_min_f32 v{a}, {hx(126.0)}, v{a}
        v_exp_f32 v{a}, v{a}
        v_mul_f32 v{b}, {hx(0.6931471805599453)}, v{b}
        v_fmac_f32 v{a}, v{a}, v{b}
        v_add_f32 v{a}, 1.0, v{a}
        v_rcp_f32 v{b}, v{a}
        v_mul_f32 v{d}, v{c}, v{b}
        v_fma_f32 v{e}, -v{d}, v{a}, v{c}
        v_fma_f32 v{c}, v{e}, v{b}, v{d}
        v_cvt_pk_bf16_f32 v{c}, 0, v{c}""".split("\n")
    for x, y in zip(silu(8, 10, 11, 12, 13), silu(9, 14, 15, 16, 17)): k(x); k(y)
    k("v_lshlrev_b32 v6, 3, v0\nds_write_b64 v6, v[8:9] offset:1024\nv_lshlrev_b32 v4, 1, v4\ns_waitcnt lgkmcnt(0)\ns_barrier")
    for i in range(14): k(f"ds_read_b32 v{8+i}, v4 offset:{1024+128*i}")
    stamp(k)
    if STAMP: k("s_waitcnt vmcnt(0)")
    stamp(k)
    A = 88
    for i in range(14):
        unpack(k, 80, 24+4*i, 4, 30)
        for j in range(8):
            k(f"v_mul_f32 v{A+j}, v{80+j}, v{8+i}" if i == 0 else f"v_fmac_f32 v{A+j}, v{80+j}, v{8+i}")
    for j in range(8): k(f"v_add_f32_dpp v{A+j}, v{A+j}, v{A+j} row_ror:8 {DP}")
    for sw in ("v_permlane16_swap_b32", "v_permlane32_swap_b32"):
        for j in range(8): k(f"v_mov_b32 v{80+j}, v{A+j}")
        for j in range(8): k(f"{sw} v{A+j}, v{80+j}")
        for j in range(8): k(f"v_add_f32 v{A+j}, v{A+j}, v{80+j}")
    stamp(k)
    k(f"""
    v_lshlrev_b32 v6, 8, v2
    v_lshl_add_u32 v6, v5, 5, v6
    v_cmp_gt_u32 vcc, 8, v1
    s_and_saveexec_b64 s[40:41], vcc
    ds_write_b128 v6, v[{A}:{A+3}]
    ds_write_b128 v6, v[{A+4}:{A+7}] offset:16
    s_mov_b64 exec, s[40:41]
    s_waitcnt lgkmcnt(0)
    s_barrier
    v_cmp_gt_u32 vcc, 64, v0
    s_and_saveexec_b64 s[40:41], vcc
    v_lshlrev_b32 v6, 2, v0
    v_lshlrev_b32 v7, 1, v0
    s_cbranch_execz {name}_end
    ds_read_b32 v8, v6
    ds_read_b32 v9, v6 offset:256
    ds_read_b32 v10, v6 offset:512
    ds_read_b32 v11, v6 offset:768
    s_lshl_b32 s31, s2, 7
    v_add_f32 v8, v8, v9
    v_add_f32 v10, v10, v11
    v_add_f32 v8, v8, v10
    v_cvt_pk_bf16_f32 v8, v8, v8
    buffer_store_short v8, v7, s[16:19], s31 offen sc1
    s_waitcnt vmcnt(0)
    """)
    stamp_end(k, 6)
    k(f"{name}_end:")
    return k
```

```python
from common import *
import os

SLOT = 32768
def slot(st): return (st % 5) * SLOT
VL = 1; VD = 2; RQ, RK, RV, RW = 6, 7, 8, 9; XA = 10; VST = 18; VM = 19; VL0, VL1 = 20, 21; T0 = 22
RA = 32; RB = 160; RC = 224
AH = 256
AR = 256+112
AO = 256+144
AS = 256+176
NR = 6
NRING = 8
SQ, SK, SV, SW, SS = 8, 12, 16, 20, 24
sM8, sM4, sOQ, sOK, sOW, sOF, sOP, sMASK, sW, sC = 40, 41, 42, 43, 44, 45, 46, 47, 48, 49

def gen_k1(name, stop=None, pref=(12, 24), stamps=False, sps=(2,4,4,2), exp=None, mall=32, xmap=2, fused=True, pper=1):
    k = Kern(name)
    import common
    def stamp(): common.stamp(k)
    stamp()
    vmq = []
    def vm(text, tag):
        k(text); vmq.append(tag)
    def wait_stage(st):
        last = max(i for i, t in enumerate(vmq) if t == ('d', st))
        n = len(vmq) - 1 - last
        return n
    def dma_items(st):
        items = []
        if st >= 44:
            part, half = divmod(st-44, 2)
            for j in range(7):
                it = []
                if st == 44 and j == 0:
                    it += [(x, None) for x in (f"v_lshrrev_b32 v{VD}, 3, v{VL}", f"v_mul_u32_u24 v{VD}, 3584, v{VD}", f"v_bfe_u32 v{VD+1}, v{VL}, 4, 1",
                           f"v_lshlrev_b32 v{VD+1}, 2, v{VD+1}", f"v_and_b32 v{VD+2}, 7, v{VL}", f"v_xor_b32 v{VD+1}, v{VD+1}, v{VD+2}",
                           f"v_lshl_add_u32 v{VD}, v{VD+1}, 4, v{VD}", f"s_mov_b32 s{SK}, s96", f"s_mov_b32 s{SK+1}, s97", f"s_mov_b32 s{SK+2}, {448*3584}",
                           f"s_lshr_b32 s{sM4}, s{sM4}, 2")]
                it += [(f"s_add_u32 m0, s{sM4}, {slot(st)+4096*j}", None), (f"s_add_u32 s{sOF}, s53, {(half*28+4*j)*8*3584+(1792 if part == 0 else 0)}", None),
                       (f"buffer_load_dwordx4 v{VD}, s[{SK}:{SK+3}], s{sOF} offen lds", ('d', st))]
                items.append(it)
            return items
        for grp in range(2):
            if st < 14:
                m0 = f"s_add_u32 m0, s{sM8}, {slot(st)+grp*4096}"
                so = f"s_add_u32 s{sOF}, s{sOQ}, {(32*st+16*grp)*(1024 if exp == 'lin' else 8192)}"; R = SQ; vs = [VD, VD+1, VD+2, VD+3]
            elif st < 30:
                s_ = (st-14) % 8
                m0 = f"s_add_u32 m0, s{sM4}, {slot(st)+grp*16384}"
                so = f"s_add_u32 s{sOF}, s{sOK}, {s_*32768+grp*16384}"
                if st < 22: R = SK; vs = [VD, VD+1, VD+2, VD+3]
                else: R = SV; vs = [VD, VD+1, VD, VD+1]
            else:
                j, q = divmod(st-30, 2)
                m0 = f"s_add_u32 m0, s{sM8}, {slot(st)+grp*4096}"
                so = f"s_add_u32 s{sOF}, s{sOW}, {(128*q+32*grp)*896+j*128}"; R = SW; vs = [VD, VD+1, VD+2, VD+3]
            for ii in range(4):
                it = []
                if ii == 0:
                    if grp == 0:
                        if st == 14:
                            it += [(f"v_accvgpr_read_b32 v{VD}, {r(AS)}", None)] + [(f"v_xor_b32 v{VD+x}, {32*x}, v{VD}", None) for x in (1, 2, 3)]
                        if st == 22:
                            it += [(f"v_accvgpr_read_b32 v{VD}, {r(AS+1)}", None), (f"v_xor_b32 v{VD+1}, 128, v{VD}", None)]
                        if st == 30:
                            it += [(f"v_accvgpr_read_b32 v{VD}, {r(AS+2)}", None)] + [(f"v_add_u32 v{VD+x}, {6144*x}, v{VD}", None) for x in (1, 2, 3)]
                    it += [(m0, None), (so, None)]
                it.append((f"buffer_load_dwordx4 v{vs[ii]}, s[{R}:{R+3}], s{sOF} offen offset:{ii*1024} lds", ('d', st)))
                items.append(it)
        return items
    def emit_item(it):
        for t, tag in it:
            if tag: vm(t, tag)
            else: k(t)

    k(f"""
    s_load_dwordx4 s[28:31], s[0:1], 8
    s_load_dwordx4 s[32:35], s[0:1], 24
    s_load_dwordx2 s[6:7], s[0:1], 112
    s_load_dwordx4 s[96:99], s[0:1], 48
    s_load_dwordx2 s[100:101], s[0:1], 72
    s_load_dwordx2 s[54:55], s[0:1], 0
    s_load_dwordx4 s[80:83], s[0:1], 80
    s_load_dwordx2 s[84:85], s[0:1], 104
    v_and_b32 v{VL}, 63, v0
    v_lshrrev_b32 v22, 6, v0
    s_cmp_ge_u32 s2, 256
    s_cbranch_scc1 {name}_end
    v_readfirstlane_b32 s{sW}, v22
    s_getpc_b64 s[92:93]
    {name}_pc:
    s_mov_b32 s94, {name}_end-{name}_pc
    s_mov_b32 s95, 0x20000
    s_lshr_b32 s5, s2, 3
    s_lshl_b32 s5, s5, 12
    v_lshlrev_b32 v23, 4, v0
    buffer_load_dwordx4 a[240:243], v23, s[92:95], s5 offen ; nowait
    XMAP
    s_mov_b32 s{sMASK}, 0xffff0000
    s_lshl_b32 s{sM8}, s{sW}, 13
    s_lshl_b32 s{sM4}, s{sW}, 12
    s_lshl_b32 s5, s3, 10
    s_add_u32 s{sOQ}, s5, s{sM8}
    s_lshl_b32 s5, s3, 20
    s_add_u32 s{sOK}, s5, {1536*512}
    s_lshl_b32 s50, s4, 13
    s_add_u32 s50, s50, s{sOK}
    s_add_u32 s{sOK}, s{sOK}, s{sM4}
    s_lshr_b32 s36, s{sW}, 1
    s_and_b32 s37, s{sW}, 1
    s_lshl_b32 s5, s3, 9
    s_lshl_b32 s38, s36, 8
    s_add_u32 s5, s5, s38
    s_lshl_b32 s38, s37, 6
    s_add_u32 s5, s5, s38
    s_mul_i32 s{sOW}, s5, 896
    s_mul_i32 s51, s3, {512*896}
    s_mul_i32 s5, s4, 14336
    s_add_u32 s51, s51, s5
    s_mul_i32 s{sOP}, s3, {XB}
    s_lshl_b32 s5, s4, 1
    s_add_u32 s5, s5, s37
    s_mul_i32 s5, s5, 28672
    s_add_u32 s{sOP}, s{sOP}, s5
    s_lshl_b32 s5, s36, 11
    s_add_u32 s{sOP}, s{sOP}, s5
    s_add_u32 s{sOP}, s{sOP}, {WS_PART}
    s_lshl_b32 s5, s4, 2
    s_add_u32 s5, s5, s{sW}
    s_mul_i32 s52, s5, {16*896}
    s_lshr_b32 s38, s2, 3
    s_mul_i32 s39, s38, 9363
    s_lshr_b32 s39, s39, 16
    s_mul_i32 s5, s39, 7
    s_sub_u32 s38, s38, s5
    s_and_b32 s5, s2, 1
    s_mul_i32 s5, s5, 7
    s_add_u32 s38, s38, s5
    s_and_b32 s5, s2, 6
    s_lshl_b32 s5, s5, 1
    s_add_u32 s39, s39, s5
    s_mul_i32 s53, s{sW}, {8*3584}
    s_lshl_b32 s5, s38, 7
    s_add_u32 s53, s53, s5
    v_lshlrev_b32 v23, 4, v{VL}
    s_lshl_b32 s5, s{sW}, 6
    v_xor_b32 v{VD}, s5, v23
    v_add_u32 v{VD+1}, {31744}, v{VD}
    v_add_u32 v{VD+2}, {2*31744}, v{VD}
    v_add_u32 v{VD+3}, {3*31744}, v{VD}
    s_waitcnt lgkmcnt(0)
    """.replace("XMAP", {1: "s_and_b32 s3, s2, 7\ns_lshr_b32 s4, s2, 3",
         2: "s_and_b32 s3, s2, 3\ns_lshl_b32 s3, s3, 1\ns_bfe_u32 s4, s2, 0x10003\ns_add_u32 s3, s3, s4\ns_bfe_u32 s4, s2, 0x10002\ns_lshl_b32 s4, s4, 4\ns_lshr_b32 s5, s2, 4\ns_add_u32 s4, s4, s5",
         4: "s_and_b32 s3, s2, 1\ns_lshl_b32 s3, s3, 2\ns_bfe_u32 s4, s2, 0x20003\ns_add_u32 s3, s3, s4\ns_bfe_u32 s4, s2, 0x20001\ns_lshl_b32 s4, s4, 3\ns_lshr_b32 s5, s2, 5\ns_add_u32 s4, s4, s5"}[xmap]))
    if exp == 'lin':
        k(f"s_mul_i32 s{sOQ}, s3, 458752\ns_lshl_b32 s5, s{sW}, 10\ns_add_u32 s{sOQ}, s{sOQ}, s5")
        for x in (1, 2, 3): k(f"v_add_u32 v{VD+x}, {x*3072}, v{VD}")
    XP = RB; WM = 224; SCR = 3*SLOT + 64*912
    k('s_mov_b32 s86, s52')
    srd(k, 92, 82, 83, 448*5376); srd(k, 88, 80, 81, 896)
    k(f"""
    s_sub_u32 s5, s2, 56
    s_cmp_lt_u32 s2, 56
    s_cselect_b32 s5, s2, s5
    s_movk_i32 s50, 2341
    s_cselect_b32 s50, 4682, s50
    s_cselect_b32 s52, 14, 28
    s_mul_i32 s51, s5, s50
    s_lshr_b32 s51, s51, 16
    s_mul_i32 s52, s52, s51
    s_sub_u32 s50, s5, s52
    s_cmp_lt_u32 s2, 56
    s_cselect_b32 s5, 0, 14
    s_add_u32 s50, s50, s5
    s_cmp_lt_u32 s2, 168
    s_cselect_b32 s94, s94, 0
    s_cselect_b32 s90, s90, 0
    s_mul_i32 s5, s51, {112*5376}
    s_lshl_b32 s52, s50, 7
    s_add_u32 s5, s5, s52
    v_lshrrev_b32 v10, 3, v0
    v_mul_u32_u24 v11, 5376, v10
    v_and_b32 v12, 7, v0
    v_lshl_add_u32 v11, v12, 4, v11
    v_mov_b32 v13, 0x7ffffff0
    v_cmp_gt_u32 vcc, 16, v10
    v_cndmask_b32 v14, v13, v11, vcc
    v_lshlrev_b32 v15, 2, v0
    s_mul_i32 s52, s51, 224
    """)
    vm(f"buffer_load_dword v240, v15, s[88:91], s52 offen", 'l')
    for i in range(4):
        vm(f"buffer_load_dwordx4 v[{WM+4*i}:{WM+4*i+3}], v{11 if i < 3 else 14}, s[92:95], s5 offen", 'l')
        if i < 3: k(f"s_add_u32 s5, s5, {32*5376}")
    srd(k, SS, 6, 7, WS_U+2048*1792)
    srd(k, SQ, 32, 33, 448*8192)
    srd(k, SK, 28, 29, 8 << 20)
    srd(k, SV, 30, 31, 8 << 20)
    srd(k, SW, 34, 35, 4096*896)
    k(f"""
    s_cmp_lt_u32 s2, 56
    s_cselect_b32 s5, s{sW}, 0
    s_cmp_eq_u32 s5, 1
    s_cselect_b64 vcc, -1, 0
    v_cndmask_b32 v16, v13, v23, vcc
    v_mov_b32 v17, v23
    v_mov_b32 v244, -1
    v_mov_b32 v245, -1
    v_mov_b32 v246, -1
    v_mov_b32 v247, -1
    s_mul_i32 s5, s2, 4400
    s_add_u32 s5, s5, {WS_ST}
    """)
    for o in (0, 1024, 2048, 3072, 3376): vm(f"buffer_store_dwordx4 v[244:247], v16, s[{SS}:{SS+3}], s5 offen offset:{o} sc1", 's')
    srd(k, 88, 54, 55, XB)
    k("s_mov_b32 exec_hi, 0x00ffffff")
    for i in range(16):
        if i and i % 4 == 0: k(f"s_add_u32 s86, s86, {4*896}")
        vm(f"buffer_load_dwordx4 v[{XP+4*i}:{XP+4*i+3}], v23, s[88:91], s86 offen offset:{(i%4)*896}", 'l')
    k("s_mov_b32 exec_hi, -1")
    k(f"""
    v_lshrrev_b32 v24, 5, v{VL}
    v_and_b32 v25, 31, v{VL}
    v_bfe_u32 v26, v{VL}, 2, 2
    v_bfe_u32 v27, v{VL}, 4, 1
    v_and_b32 v28, 3, v{VL}
    v_lshlrev_b32 v29, 5, v27
    v_lshl_add_u32 v30, v28, 3, v29
    v_and_b32 v31, 1, v28
    v_lshlrev_b32 v31, 1, v31
    v_lshrrev_b32 v28, 1, v28
    v_or_b32 v28, v28, v31
    v_lshl_add_u32 v29, v28, 3, v29
    """)
    k(f"""
    v_mul_u32_u24 v{RQ}, {8192+64}, v26
    v_lshl_add_u32 v{RQ}, v24, 11, v{RQ}
    v_add_u32 v{RQ}, v{RQ}, v29
    s_lshl_b32 s5, s36, 9
    v_add_u32 v{RQ}, s5, v{RQ}
    v_and_b32 v31, 15, v25
    v_xor_b32 v31, v31, v24
    v_lshlrev_b32 v31, 4, v31
    v_lshl_add_u32 v{RK}, v25, 9, v31
    v_mul_u32_u24 v{RV}, {512+64}, v26
    v_lshl_add_u32 v{RV}, v24, 11, v{RV}
    v_add_u32 v{RV}, v{RV}, v30
    v_lshlrev_b32 v{RW}, 7, v26
    v_lshl_add_u32 v{RW}, v24, 9, v{RW}
    v_add_u32 v{RW}, v{RW}, v29
    v_lshrrev_b32 v31, 1, v26
    v_xor_b32 v31, s36, v31
    v_lshl_add_u32 v{RW}, v31, 6, v{RW}
    s_lshl_b32 s5, s36, 14
    v_add_u32 v{RW}, s5, v{RW}
    v_lshlrev_b32 v{VST}, 4, v25
    v_lshl_add_u32 v{VST}, v24, 9, v{VST}
    s_lshl_b32 s5, s37, 3
    v_xor_b32 v31, s5, v25
    v_xor_b32 v31, v31, v24
    v_lshlrev_b32 v31, 4, v31
    v_lshl_add_u32 v31, v24, 9, v31
    v_accvgpr_write_b32 {r(AS)}, v31
    v_lshlrev_b32 v31, 2, v24
    v_xor_b32 v31, v31, v25
    v_lshlrev_b32 v31, 4, v31
    v_lshl_add_u32 v31, v24, 9, v31
    v_accvgpr_write_b32 {r(AS+1)}, v31
    v_lshrrev_b32 v31, 3, v{VL}
    v_mul_u32_u24 v31, 896, v31
    v_lshlrev_b32 v27, 2, v27
    v_and_b32 v28, 7, v{VL}
    v_xor_b32 v28, v28, v27
    v_lshl_add_u32 v31, v28, 4, v31
    v_accvgpr_write_b32 {r(AS+2)}, v31
    s_mul_i32 s5, s{sW}, {16*912}
    s_add_u32 s5, s5, {3*SLOT}
    v_add_u32 v23, s5, v23
    s_mul_i32 s5, s37, {32*912}
    s_add_u32 s5, s5, {3*SLOT}
    v_mul_u32_u24 v22, 912, v25
    v_lshl_add_u32 v22, v24, 4, v22
    v_add_u32 v22, s5, v22
    s_mov_b32 s{sC}, {hx(LOG2E/16)}
    """)
    def pk(op, d, *src, mod=""):
        return f"v_pk_{op}_f32 v[{d}:{d+1}], " + ", ".join(x if isinstance(x, str) else f"v[{x}:{x+1}]" for x in src) + mod
    NEG = " op_sel_hi:[1,0] neg_lo:[0,1] neg_hi:[0,1]"
    def tred(S):
        for j in range(0, 8, 2): k(f"v_permlane32_swap_b32 v{S+j}, v{S+j+1}")
        for j in range(0, 8, 2): k(f"v_add_f32 v{S+j}, v{S+j}, v{S+j+1}")
        for j in (0, 4): k(f"v_permlane16_swap_b32 v{S+j}, v{S+j+2}")
        for j in (0, 4): k(f"v_add_f32 v{S+j}, v{S+j}, v{S+j+2}")
        for pat in ("quad_perm:[1,0,3,2]", "quad_perm:[2,3,0,1]", "row_half_mirror", "row_mirror"):
            for j in (0, 4): k(f"v_add_f32_dpp v{S+j}, v{S+j}, v{S+j} {pat} {DP}")
    LN = (0, 32, 16, 48)
    def lnhalf(hf):
        S = 10; Q = 24
        for i in range(8):
            x = RA+8*(8*hf+i)
            unpack(k, x, XP+4*(8*hf+i), 4, sMASK)
            k(pk('add', 20, x, x+2)); k(pk('add', 252, x+4, x+6)); k(pk('add', 20, 20, 252)); k(f"v_add_f32 v{S+i}, v20, v21")
            k(f"v_cndmask_b32 v{S+i}, 0, v{S+i}, vcc")
        tred(S)
        for j in (0, 4): k(f"v_mul_f32 v{S+j}, {hx(1/448)}, v{S+j}")
        k(f"v_readlane_b32 s88, v{S}, 0")
        for i in range(8):
            x = RA+8*(8*hf+i); sp = 88+2*(i & 1)
            if i < 7: k(f"v_readlane_b32 s{88+2*((i+1) & 1)}, v{S+4*((i+1) >> 2)}, {LN[(i+1) & 3]}")
            for j in range(4):
                k(pk('add', 252+2*(j & 1), x+2*j, f"s[{sp}:{sp+1}]", mod=NEG))
                k(pk('mul', 20, 252, 252) if j == 0 else pk('fma', 20, 252+2*(j & 1), 252+2*(j & 1), 20))
            k(f"v_add_f32 v{Q+i}, v20, v21\nv_cndmask_b32 v{Q+i}, 0, v{Q+i}, vcc")
        tred(Q)
        for j in (0, 4):
            q = Q+j; m = S+j
            k(f"v_mul_f32 v{q}, {hx(1/448)}, v{q}")
            k("\n".join([f"v_cvt_pk_bf16_f32 v{q}, 0, v{q}", f"v_cvt_pk_bf16_f32 v{m}, 0, v{m}", f"v_add_f32 v{q}, {hx(1e-5)}, v{q}",
                f"v_cvt_pk_bf16_f32 v{q}, 0, v{q}", f"v_sqrt_f32 v{q}, v{q}", f"v_cvt_pk_bf16_f32 v{q}, 0, v{q}", f"v_rcp_f32 v{q}, v{q}"]))
        k(f"v_readlane_b32 s88, v{S}, 0\nv_readlane_b32 s89, v{Q}, 0")
        for i in range(8):
            x = RA+8*(8*hf+i); sp = 88+2*(i & 1); sn = 88+2*((i+1) & 1)
            if i < 7: k(f"v_readlane_b32 s{sn}, v{S+4*((i+1) >> 2)}, {LN[(i+1) & 3]}\nv_readlane_b32 s{sn+1}, v{Q+4*((i+1) >> 2)}, {LN[(i+1) & 3]}")
            for j in range(4): k(pk('add', x+2*j, x+2*j, f"s[{sp}:{sp+1}]", mod=NEG))
            for j in range(8): rnd(k, x+j, x+j)
            for j in range(4): k(pk('mul', x+2*j, x+2*j, f"s[{sp}:{sp+1}]", mod=" op_sel:[0,1] op_sel_hi:[1,1]"))
            for j in range(8): rnd(k, x+j, x+j)
    L32 = struct.unpack('<f', struct.pack('<f', LOG2E))[0]
    srd(k, 92, 84, 85, 256)
    k(f"""
    s_cmp_ge_u32 s2, 168
    s_cbranch_scc1 {name}_pf
    s_mov_b32 s88, {hx(-LOG2E)}
    s_mov_b32 s89, {hx(-(LOG2E-L32))}
    v_and_b32 v241, s{sMASK}, v240
    v_lshlrev_b32 v240, 16, v240
    """)
    def silu(c, a, b, d, e):
        return f"""v_mul_f32 v{a}, s88, v{c}
        v_fma_f32 v{b}, s88, v{c}, -v{a}
        v_fmac_f32 v{b}, s89, v{c}
        v_min_f32 v{a}, {hx(126.0)}, v{a}
        v_exp_f32 v{a}, v{a}
        v_mul_f32 v{b}, {hx(0.6931471805599453)}, v{b}
        v_fmac_f32 v{a}, v{a}, v{b}
        v_add_f32 v{a}, 1.0, v{a}
        v_rcp_f32 v{b}, v{a}
        v_mul_f32 v{d}, v{c}, v{b}
        v_fma_f32 v{e}, -v{d}, v{a}, v{c}
        v_fma_f32 v{c}, v{e}, v{b}, v{d}
        v_cvt_pk_bf16_f32 v{c}, 0, v{c}""".split("\n")
    for x, y in zip(silu(240, 10, 11, 12, 13), silu(241, 14, 15, 16, 17)): k(x); k(y)
    k(f"""v_lshlrev_b32 v10, 3, v0
    v_add_u32 v10, {SCR}, v10
    ds_write_b64 v10, v[240:241]
    v_lshrrev_b32 v11, 3, v0
    v_lshlrev_b32 v11, 2, v11
    v_add_u32 v11, {SCR}, v11
    s_waitcnt lgkmcnt(0)
    s_barrier""")
    stamp()
    for i in range(4): k(f"ds_read_b32 v{240+i}, v11 offset:{128*i}")
    A = 244
    for i in range(4):
        unpack(k, 24, WM+4*i, 4, sMASK)
        for j in range(8): k(f"v_mul_f32 v{A+j}, v{24+j}, v{240+i}" if i == 0 else f"v_fmac_f32 v{A+j}, v{24+j}, v{240+i}")
    for j in range(8): k(f"v_add_f32_dpp v{A+j}, v{A+j}, v{A+j} row_ror:8 {DP}")
    for sw in ("v_permlane16_swap_b32", "v_permlane32_swap_b32"):
        for j in range(8): k(f"v_mov_b32 v{24+j}, v{A+j}")
        for j in range(8): k(f"{sw} v{A+j}, v{24+j}")
        for j in range(8): k(f"v_add_f32 v{A+j}, v{A+j}, v{24+j}")
    k(f"""
    v_and_b32 v10, 7, v0
    v_lshlrev_b32 v10, 5, v10
    s_lshl_b32 s5, s{sW}, 8
    s_add_u32 s5, s5, {SCR+2048}
    v_add_u32 v10, s5, v10
    ds_write_b128 v10, v[{A}:{A+3}]
    ds_write_b128 v10, v[{A+4}:{A+7}] offset:16
    v_lshlrev_b32 v11, 2, v{VL}
    v_add_u32 v12, {SCR+2048}, v11
    s_waitcnt vmcnt(16) lgkmcnt(0)
    s_barrier
    s_cmp_lg_u32 s{sW}, 0
    s_cbranch_scc1 {name}_nog
    ds_read_b32 v13, v12
    ds_read_b32 v14, v12 offset:256
    ds_read_b32 v15, v12 offset:512
    ds_read_b32 v16, v12 offset:768
    s_mul_i32 s5, s51, 10752
    s_lshl_b32 s52, s50, 8
    s_add_u32 s5, s5, s52
    s_add_u32 s5, s5, {WS_XN}
    s_lshl_b32 s52, s50, 2
    s_add_u32 s52, s52, s51
    v_add_f32 v13, v13, v14
    v_add_f32 v15, v15, v16
    v_add_f32 v13, v13, v15
    buffer_store_dword v13, v11, s[{SS}:{SS+3}], s5 offen sc1
    v_mov_b32 v14, 0
    v_mov_b32 v15, 1
    s_waitcnt vmcnt(0)
    buffer_store_byte v15, v14, s[92:95], s52 offen sc1
    s_branch {name}_join
    {name}_pf:
    s_sub_u32 s28, s2, 168
    s_lshl_b32 s28, s28, 2
    s_add_u32 s28, s28, s{sW}
    s_mul_i32 s29, s28, 10432
    s_mul_i32 s30, s28, 1490
    s_lshr_b32 s30, s30, 16
    s_mul_i32 s31, s30, 44
    s_sub_u32 s31, s28, s31
    s_mul_i32 s31, s31, 5968
    s_lshl_b32 s30, s30, 20
    s_add_u32 s30, s30, s31
    s_add_u32 s30, s30, {1536*512}
    """)
    npf = 0
    for R, so, tot in ((SQ, 29, 10432), (SK, 30, 5968), (SV, 30, 5968), (SW, 29, 10432)):
        base = 0
        k(f"s_mov_b32 s31, s{so}")
        for o in list(range(0, tot-1024, 1024)) + [tot-1024]:
            if o-base > 4095: k(f"s_add_u32 s31, s31, {o-base}"); base = o
            k(f"buffer_load_dwordx4 a[240:243], v17, s[{R}:{R+3}], s31 offen offset:{o-base} ; nowait"); npf += 1
    k(f"""s_waitcnt vmcnt({npf})
    s_branch {name}_join
    {name}_nog:
    s_waitcnt vmcnt(0)
    {name}_join:
    """)
    stamp()
    for st in range(3):
        for it in dma_items(st): emit_item(it)
    k(f"v_cmp_gt_u32 vcc, 56, v{VL}")
    lnhalf(0); lnhalf(1)
    stamp()
    L = k.lab()
    k(f"""
    s_sub_u32 s50, s2, 154
    s_cmp_lt_u32 s50, 42
    s_cselect_b32 s5, s50, 0
    s_cmp_ge_u32 s50, 14
    s_cselect_b32 s50, s5, 0
    v_min_u32 v10, 14, v{VL}
    v_cmp_eq_u32 vcc, 14, v10
    v_mov_b32 v11, s50
    v_cndmask_b32 v10, v10, v11, vcc
    v_lshlrev_b32 v10, 2, v10
    s_mov_b32 s5, 0
    s_mov_b32 s51, 0x01010101
    {L}:
    buffer_load_dword v11, v10, s[92:95], 0 offen sc1
    s_add_u32 s5, s5, 1
    s_waitcnt vmcnt(0)
    v_cmp_ne_u32 vcc, s51, v11
    s_cbranch_vccz {L}_ok
    s_cmp_lt_u32 s5, 0x20000
    s_cbranch_scc1 {L}
    {L}_ok:
    v_lshlrev_b32 v10, 4, v0
    v_lshlrev_b32 v11, 2, v{VL}
    v_mov_b32 v13, 0x7ffffff0
    s_movk_i32 s5, 224
    v_cmp_gt_u32 vcc, s5, v0
    v_cndmask_b32 v14, v13, v10, vcc
    s_cmp_lg_u32 s50, 0
    s_cselect_b64 vcc, -1, 0
    v_cndmask_b32 v11, v13, v11, vcc
    s_lshl_b32 s51, s50, 8
    s_add_u32 s51, s51, {WS_XN}
    s_mov_b32 s5, {WS_XN}
    """)
    stamp()
    for q in range(4):
        k(f"buffer_load_dwordx4 v[{WM+4*q}:{WM+4*q+3}], v14, s[{SS}:{SS+3}], s5 offen\nbuffer_load_dword v{240+q}, v11, s[{SS}:{SS+3}], s51 offen sc1")
        if q < 3: k(f"s_add_u32 s5, s5, 10752\ns_add_u32 s51, s51, 10752")
    k(f"""v_add_u32 v10, {SCR+3072}, v10
    v_lshlrev_b32 v12, 5, v{VL}
    v_add_u32 v12, {SCR+3072}, v12
    s_movk_i32 s5, 112
    v_cmp_le_u32 vcc, s5, v0
    v_cndmask_b32 v13, 0, 1.0, vcc""")
    for j in (0, 2): k(pk('add', WM+j, WM+j, WM+4+j)); k(pk('add', WM+8+j, WM+8+j, WM+12+j)); k(pk('add', WM+j, WM+j, WM+8+j))
    for j in range(4): rnd(k, WM+j, WM+j); k(f"v_add_f32 v{WM+j}, v{WM+j}, v13"); rnd(k, WM+j, WM+j)
    k(f"""ds_write_b128 v10, v[{WM}:{WM+3}]
    v_add_f32 v240, v240, v241
    v_add_f32 v242, v242, v243
    v_add_f32 v240, v240, v242
    v_cvt_pk_bf16_f32 v240, v240, v240
    v_lshlrev_b32 v11, 1, v{VL}
    v_mov_b32 v13, 0x7ffffff0
    s_cmp_lg_u32 s50, 0
    s_cselect_b32 s5, s{sW}, 1
    s_cmp_eq_u32 s5, 0
    s_cselect_b64 vcc, -1, 0
    s_movk_i32 s28, 252
    s_cselect_b32 s28, s28, 0x7ffffff0
    v_cndmask_b32 v11, v13, v11, vcc
    s_lshl_b32 s51, s50, 7
    buffer_store_short v240, v11, s[{SS}:{SS+3}], s51 offen sc1
    s_waitcnt lgkmcnt(0)
    s_barrier""")
    vmq.clear(); vmq.extend([('d', 0), ('d', 1), ('d', 2)] + ['l']*8 + ['fs'])
    SA = WM; C1 = WM+8
    for j in range(2): k(f"ds_read_b128 v[{SA+4*j}:{SA+4*j+3}], v12 offset:{16*j}\nds_read_b128 v[{C1+4*j}:{C1+4*j+3}], v12 offset:{1792+16*j}")
    k("s_mov_b32 exec_hi, 0x00ffffff")
    for i in range(16):
        x = RA+8*i
        for j in range(4): k(pk('mul', x+2*j, x+2*j, C1+2*j))
        for j in range(8): rnd(k, x+j, x+j)
        for j in range(4): k(pk('add', x+2*j, x+2*j, SA+2*j))
        for j in range(4): k(f"v_cvt_pk_bf16_f32 v{x+j}, v{x+2*j}, v{x+2*j+1}")
        k(f"ds_write_b128 v23, v[{x}:{x+3}] offset:{i*912}")
    k("s_mov_b32 exec_hi, -1")
    k(f"s_waitcnt vmcnt({wait_stage(0)}) lgkmcnt(0)\ns_barrier")
    stamp()

    mf = []; rd = []; stage_first = {}
    def ring(n): return AR + 4*(n % NRING)
    def add(st, D, B, C, reads):
        n = len(mf)
        stage_first.setdefault(st, n)
        A = ring(n)
        mf.append(f"v_mfma_f32_32x32x16_bf16 {r(D,16)}, {r(A,4)}, {r(B,4)}, {r(D,16) if C else 0}")
        rd.append([x.replace('@0', r(A, 2)).replace('@1', r(A+2, 2)).replace('@', r(A, 4)) for x in reads])
    for st in range(14):
        for u in range(2):
            for dt in range(8):
                pre = [f"v_xor_b32 v{XA+dt}, {dt*64 | slot(st)}, v{RQ}"] if (u == 0 and dt < 4) else []
                add(st, RA+16*dt, AH+4*(2*st+u), st+u > 0, pre + [
                    f"ds_read_b64_tr_b16 @{e}, v{XA+(dt&3)} offset:{(4*u+e)*1024+(dt>>2)*256}" for e in range(2)])
    S0 = len(mf)
    for s_ in range(8):
        st = 14+s_
        for kt in range(2):
            for t in range(16):
                pre = [f"v_xor_b32 v{XA+t}, {32*t | slot(st)}, v{RK}"] if (kt == 0 and t < 8) else []
                add(st, RC+16*kt, RB+4*t, t > 0, pre + [f"ds_read_b128 @, v{XA+(t&7)} offset:{256*(t>>3)+kt*16384}"])
    P0 = len(mf)
    OT = [RB, RB+16, RB+32, RB+48, AO, AO+16, RC, RC+16]
    for s_ in range(8):
        st = 22+s_
        for u in range(4):
            for dt in range(8):
                pre = [f"v_xor_b32 v{XA+dt}, {dt*64 | slot(st)}, v{RV}"] if (u == 0 and dt < 4) else []
                add(st, OT[dt], RA+4*(4*s_+u), s_+u > 0, pre + [
                    f"ds_read_b64_tr_b16 @{e}, v{XA+(dt&3)} offset:{u*8192+e*4096+(dt>>2)*256}" for e in range(2)])
    W0 = len(mf)
    OWN, OTH = RA, RA+64
    WA = [RB, RB+16]; WT = RB+32
    for j in range(7):
        order = [(0, 0), (1, 0), (0, 1), (1, 1)] if j == 0 else [(0, 0), (0, 1), (1, 0), (1, 1)]
        for oi, (q, oth) in enumerate(order):
            st = 30+2*j+q
            xa = XA + (oi & 1)
            for u in range(8):
                pre = [f"v_xor_b32 v{xa}, {oth*16384 | slot(st)}, v{RW}"] if u == 0 else []
                add(st, WA[j & 1], (OTH if oth else OWN)+4*(8*q+u), oi+u > 0, pre + [
                    f"ds_read_b64_tr_b16 @{e}, v{xa} offset:{u*2048+e*1024}" for e in range(2)])
    N = len(mf)
    if exp == 'halfrd':
        for n in range(N):
            if (n < S0 or n >= W0) and n % 2: rd[n] = [x for x in rd[n] if not x.startswith('ds_')]
    if exp == 'pair':
        for n in range(0, N, 2):
            if (n < S0 or n >= W0): rd[n] = rd[n] + rd[n+1]; rd[n+1] = []
    fill = [[] for _ in range(N+1)]
    pre_mf = [[] for _ in range(N+1)]
    bar = {}
    for st in range(1, 44):
        g = stage_first[st] - NR
        iss = [st+3] if st+3 < (47 if fused else 44) else []
        if st == 1: iss = [3, 4]
        if st in (30, 31): iss = []
        bar[g] = (st, iss)
    fill[70] += ["@FIN"]
    fill[W0+20] += ["v_mov_b32 v30, 252", "buffer_load_dword v30, v30, s[92:95], 0 offen sc1"]
    fill[W0+39] += ["@CHK"]
    if mall:
        pl = [(98, 2048*4096, 8192, 8), (96, 448*3584, 1568, 2), (100, 896*896, 784, 1)]
        g = S0+20
        for p, n, per, cnt in pl:
            fill[g-1] += [f"s_mov_b32 s88, s{p}", f"s_mov_b32 s89, s{p+1}", f"s_mov_b32 s90, {n}", "s_mov_b32 s91, 0x20000",
                          f"s_lshl_b32 s5, s2, 2", f"s_add_u32 s5, s5, s{sW}", f"s_mul_i32 s52, s5, {per}", f"v_lshlrev_b32 v27, 4, v{VL}"]
            for c in range(cnt):
                fill[g] += [f"buffer_load_dwordx4 v[28:31], v27, s[88:91], s52 offen ; nowait", "s_add_u32 s52, s52, 1024"]
                g += mall
    if fused:
        g = W0+40
        fill[g] += [f"s_mov_b32 s{SQ}, s54", f"s_mov_b32 s{SQ+1}, s55", f"s_mov_b32 s{SQ+2}, {XB}", f"s_mul_i32 s5, s{sW}, 14",
                    f"v_lshrrev_b32 v26, 3, v{VL}", f"v_add_u32 v26, s5, v26"]
        fill[g+1] += [f"v_and_b32 v27, 7, v{VL}", f"v_cmp_gt_u32 vcc, 56, v{VL}", f"v_mov_b32 v31, 0x7ffffff0", f"v_lshlrev_b32 v28, 9, v26", f"v_lshl_add_u32 v28, v27, 4, v28"]
        fill[g+2] += [f"v_lshlrev_b32 v26, 4, v26", f"v_mul_u32_u24 v27, 896, v27", f"v_add_u32 v27, v27, v26", f"v_cndmask_b32 v26, v31, v26, vcc",
                      f"v_cndmask_b32 v27, v31, v27, vcc", f"v_cndmask_b32 v28, v31, v28, vcc"]
        fill[g+3] += [f"s_lshl_b32 s5, s4, 3", f"s_add_u32 s52, s5, s3", f"s_mul_i32 s5, s52, {8*896}"]
        for i in range(2):
            fill[g+4+i] += [f"buffer_load_dwordx4 v[{224+4*i}:{227+4*i}], v27, s[{SQ}:{SQ+3}], s5 offen offset:{112*i}"]
            for m in range(3):
                fill[g+6+3*i+m] += [f"buffer_load_dwordx4 v[{232+8*m+4*i}:{235+8*m+4*i}], v26, s[{SS}:{SS+3}], 0 offen offset:{WS_MOD+(2+m)*896+112*i}"]
    hreads = [f"ds_read_b128 {r(AH+4*t,4)}, v22 offset:{32*t}" for t in range(28)]
    for g in range(9): fill[g] += hreads[2+3*g:5+3*g]
    for t in range(16):
        dt, jj = t >> 1, t & 1
        fill[S0-5+t] += [f"v_cvt_pk_bf16_f32 v{RB+4*t+i}, v{RA+16*dt+8*jj+2*i}, v{RA+16*dt+8*jj+2*i+1}" for i in range(4)]
    def stile(kt):
        c = RC+16*(kt & 1)
        mx = [f"v_max_f32 v{VM}, v{c}, v{c+1}" if (kt == 0 and i == 0) else f"v_max3_f32 v{VM}, v{VM}, v{c+2*i}, v{c+2*i+1}" for i in range(8)]
        pk = [f"v_cvt_pk_bf16_f32 v{RA+8*kt+i}, v{c+2*i}, v{c+2*i+1}" for i in range(8)]
        return mx, pk
    for kt in range(15):
        mx, pk = stile(kt)
        g0 = S0+16*(kt+1)+3
        for i in range(8): fill[g0+i] += [mx[i], pk[i]]
    def expk(kap):
        o = []
        for i in range(4):
            p = RA+4*kap+i; a_, b_ = T0+2*(i & 1), T0+2*(i & 1)+1
            first = kap == 0 and i == 0
            o.append([f"v_lshlrev_b32 v{a_}, 16, v{p}", f"v_and_b32 v{b_}, s{sMASK}, v{p}",
                      f"v_fma_f32 v{a_}, v{a_}, s{sC}, v{VM}", f"v_fma_f32 v{b_}, v{b_}, s{sC}, v{VM}",
                      f"v_exp_f32 v{a_}, v{a_}", f"v_exp_f32 v{b_}, v{b_}",
                      f"v_add_f32 v{VL0}, {'0' if first else f'v{VL0}'}, v{a_}", f"v_add_f32 v{VL1}, {'0' if first else f'v{VL1}'}, v{b_}",
                      f"v_cvt_pk_bf16_f32 v{p}, v{a_}, v{b_}"])
        return o
    mx, pk = stile(15)
    pre_mf[P0] += mx + [f"v_mov_b32 v{T0}, v{VM}"] + pk[:2] + [f"v_permlane32_swap_b32 v{VM}, v{T0}", f"v_max_f32 v{VM}, v{VM}, v{T0}",
                   f"v_cvt_pk_bf16_f32 v{VM}, 0, v{VM}", f"v_mul_f32 v{VM}, s{sC}, v{VM}", f"v_sub_f32 v{VM}, 0, v{VM}"]
    for x in expk(0): pre_mf[P0] += x
    pre_mf[P0] += pk[2:]
    for kap in range(1, 32):
        for i, x in enumerate(expk(kap)):
            g = P0+8*(kap-1)+2*i
            fill[g] += x[:5]; fill[g+1] += x[5:]
    fill[W0-7] += [f"v_add_f32 v{VL0}, v{VL0}, v{VL1}", f"v_mov_b32 v{VL1}, v{VL0}"]
    fill[W0-6] += [f"v_permlane32_swap_b32 v{VL0}, v{VL1}", f"v_add_f32 v{VL0}, v{VL0}, v{VL1}", f"v_rcp_f32 v{VL0}, v{VL0}",
                   f"s_lshl_b32 s5, s{sW}, 14", f"s_add_u32 s5, s5, {3*SLOT}", f"v_lshlrev_b32 v{XA+4}, 4, v{VL}",
                   f"v_add_u32 v{XA+4}, s5, v{XA+4}", f"s_xor_b32 s5, s{sW}, 2"]
    fill[W0-6] += [f"s_lshl_b32 s5, s5, 14", f"s_add_u32 s5, s5, {3*SLOT}", f"v_lshlrev_b32 v{XA+5}, 4, v{VL}", f"v_add_u32 v{XA+5}, s5, v{XA+5}"]
    def norm(dt, pkd):
        o = []; c = OT[dt]
        for b in range(2):
            src = c+8*b
            if c >= 256:
                o += [f"v_accvgpr_read_b32 v{T0+i}, {r(src+i)}" for i in range(8)]; src = T0
            if pkd: o += [f"v_pk_mul_f32 v[{src+2*i}:{src+2*i+1}], v[{src+2*i}:{src+2*i+1}], v[{VL0}:{VL1}] op_sel_hi:[1,0]" for i in range(4)]
            else: o += [f"v_mul_f32 v{src+i}, v{src+i}, v{VL0}" for i in range(8)]
            d = OWN+8*dt+4*b
            o += [f"v_cvt_pk_bf16_f32 v{d+i}, v{src+2*i}, v{src+2*i+1}" for i in range(4)]
            o += [f"ds_write_b128 v{XA+4}, v[{d}:{d+3}] offset:{(2*dt+b)*1024}"]
        return o
    fill[W0-3] += norm(0, False)[:13]
    fill[W0-2] += norm(0, False)[13:]
    fill[W0-1] += norm(1, False)
    pre_mf[W0] += norm(2, True) + norm(3, True)
    seq = norm(4, False) + norm(5, False) + norm(6, False) + norm(7, False)
    per = (len(seq)+7)//8
    for g in range(8): fill[W0+g] += seq[per*g:per*(g+1)]
    X1 = W0+8; X2 = W0+14
    oreads = [f"ds_read_b128 v[{OTH+4*i}:{OTH+4*i+3}], v{XA+5} offset:{i*1024}" for i in range(16)]
    for g in range(4): fill[X1+1+g] += oreads[4*g:4*g+4]
    def wepi(j):
        c = WA[j & 1]; o = []
        for b in range(2):
            t = WT+4*b
            o += [f"v_cvt_pk_bf16_f32 v{t+i}, v{c+8*b+2*i}, v{c+8*b+2*i+1}" for i in range(4)]
            o += [f"buffer_store_dwordx4 v[{t}:{t+3}], v{VST}, s[{SS}:{SS+3}], s{sOP} offen offset:{b*1024} sc1"]
        o += [f"s_add_u32 s{sOP}, s{sOP}, 4096"]
        return o
    for j in range(6):
        e = wepi(j); g = W0+32*(j+1)+3
        fill[g] += e[:2]; fill[g+1] += e[2:5]; fill[g+2] += e[5:7]; fill[g+3] += e[7:]
    def dump(regs, n):
        srd(k, 52, 6, 7, 64 << 20, WS_DBG)
        k(f"s_lshl_b32 s5, s2, 2\ns_add_u32 s5, s5, s{sW}\ns_mul_i32 s5, s5, {n*256}\nv_lshlrev_b32 v{T0}, 2, v{VL}\ns_waitcnt vmcnt(0) lgkmcnt(0)\ns_nop 15")
        for i in range(n):
            k(f"buffer_store_dword v{regs+i}, v{T0}, s[52:55], s5 offen\ns_add_u32 s5, s5, 256")
            if i % 32 == 31: k("s_waitcnt vmcnt(0)")
        k(f"s_waitcnt vmcnt(0)\ns_branch {name}_end")
    k("\n".join(hreads[:2]))
    for n in range(NR): k("\n".join(rd[n]))
    pend = []
    for n in range(N):
        if stop == 'Q' and n == S0+12: dump(RB, 64); break
        if stop == 'S' and n == P0+8: dump(RA, 128); break
        if stop == 'O' and n == W0+16: dump(RA, 128); break
        if n in (((S0, P0, W0) if os.environ.get('K1ST') else (S0, W0,)) if fused else (16, S0, P0, W0-8, W0, W0+32, W0+128)): stamp()
        if pre_mf[n]: k("\n".join(pre_mf[n]))
        k(mf[n])
        if n in bar:
            st, iss = bar[n]
            lg = " lgkmcnt(0)" if st == 30 else (" lgkmcnt(2)" if st == 1 else "")
            assert not any(t == ('d', st) for it in pend for _, t in it)
            if exp in ('nodma', 'nowait'): k(f"s_waitcnt vmcnt(63){lg}\ns_barrier")
            else: k(f"s_waitcnt vmcnt({wait_stage(st)}){lg}\ns_barrier")
            for s_ in iss: pend += dma_items(s_)
        if n == X1: k("s_waitcnt lgkmcnt(0)\ns_barrier")
        if n == X2:
            k("s_waitcnt lgkmcnt(2)\ns_barrier")
            pend += dma_items(33) + dma_items(34)
        if n+NR < N: k("\n".join(rd[n+NR]))
        for t in fill[n]:
            if t == '@FIN':
                k(f"v_mov_b32 v30, s28\nv_mov_b32 v31, 1\ns_mov_b64 exec, 1\ns_waitcnt vmcnt({len(vmq)-1-vmq.index('fs')})")
                vm("buffer_atomic_add v31, v30, s[92:95], 0 offen sc1", 's')
                k("s_mov_b64 exec, -1")
            elif t == '@CHK':
                L = k.lab()
                k(f"""v_cmp_eq_u32 vcc, 28, v30
                s_mov_b32 s5, 0
                s_cbranch_vccnz {L}_ok
                {L}:
                v_mov_b32 v30, 252
                buffer_load_dword v30, v30, s[92:95], 0 offen sc1
                s_add_u32 s5, s5, 1
                s_waitcnt vmcnt(0)
                v_cmp_eq_u32 vcc, 28, v30
                s_cbranch_vccnz {L}_ok
                s_cmp_lt_u32 s5, 0x20000
                s_cbranch_scc1 {L}
                {L}_ok:""")
            elif t.startswith('buffer_store'):
                if exp != 'nost': vm(t, 's')
            elif t.startswith('buffer_load'): vm(t, 'l')
            else: k(t)
        sp = sps[0] if n < S0 else sps[1] if n < P0 else sps[2] if n < W0 else sps[3]
        if len(pend) > 8: sp = 1
        if pend and n % sp == (sp-1 if exp == 'pair' else 0):
            it = pend.pop(0)
            if exp == 'nodma': vmq.extend(t for _, t in it if t)
            else: emit_item(it)
    if fused:
        assert not pend
        k("s_waitcnt lgkmcnt(0)\ns_barrier")
    if not stop:
        for t in wepi(6)[:-1]: k(t)
    if fused:
        k.last_dma = lambda: [k(t) for it in dma_items(47) for t, _ in it]
        return k
    stamp_end(k, 1)
    k(f"{name}_end:")
    return k
```

```python
from common import *
from tail import red8, swap32_add, rstd_ops, lanefields, VQ, interleave, KB, KK, ZB
from k1 import gen_k1, SS, sW, sMASK
WS = f"s[{SS}:{SS+3}]"
def poll(k, va, so, tmp):
    L = k.lab()
    k(f"""s_mov_b32 s5, 0
    {L}:
    buffer_load_dword v{tmp}, v{va}, {WS}, s{so} offen sc1
    s_add_u32 s5, s5, 1
    s_waitcnt vmcnt(0)
    v_cmp_eq_u32 vcc, -1, v{tmp}
    s_cbranch_vccz {L}_ok
    s_cmp_lt_u32 s5, 0x20000
    s_cbranch_scc1 {L}
    {L}_ok:""")
def flag(k, so, z):
    k(f"v_mov_b32 v{z}, 0\ns_waitcnt vmcnt(0)\nbuffer_store_dword v{z}, v{z}, {WS}, s{so} offen sc1")
def pk(op, d, *src, mod=""):
    return f"v_pk_{op}_f32 v[{d}:{d+1}], " + ", ".join(x if isinstance(x, str) else f"v[{x}:{x+1}]" for x in src) + mod
def gelu2(x, t, final):
    o = [f"v_cvt_pk_bf16_f32 v{x}, 0, v{x}", f"v_cvt_pk_bf16_f32 v{x+1}, 0, v{x+1}", pk('mul', t, x, x), pk('fma', t, t, "s[40:41]", 12), pk('mul', t, t, x),
         f"v_exp_f32 v{t}, v{t}", f"v_exp_f32 v{t+1}, v{t+1}", pk('add', t, t, "s[42:43]"), f"v_rcp_f32 v{t}, v{t}", f"v_rcp_f32 v{t+1}, v{t+1}", pk('mul', x, x, t)]
    if final is None: o += [f"v_cvt_pk_bf16_f32 v{x}, 0, v{x}", f"v_cvt_pk_bf16_f32 v{x+1}, 0, v{x+1}"]
    else: o += [f"v_cvt_pk_bf16_f32 v{final}, v{x}, v{x+1}"]
    return o

def gen_mega(name, k1o={}, spf=False, per=5):
    k = gen_k1(name, fused=True, **k1o)
    M = sMASK
    import common
    stamp = (lambda k: None) if os.environ.get('K1ST') else common.stamp
    if not os.environ.get('K1ST'): k.nst = min(getattr(k, 'nst', 0), 1)
    stamp(k)
    k(f"""
    s_lshl_b32 s5, s4, 1
    s_add_u32 s5, s5, s37
    s_lshl_b32 s5, s5, 3
    s_add_u32 s5, s5, s3
    s_lshl_b32 s5, s5, 1
    s_add_u32 s5, s5, s36
    s_lshl_b32 s5, s5, 2
    s_add_u32 s40, s5, {WS_F1}
    """)
    flag(k, 40, 22)
    k(f"""
    s_lshr_b32 s40, s52, 2
    s_mul_i32 s32, s40, 28672
    s_and_b32 s5, s52, 3
    s_lshl_b32 s5, s5, 7
    s_add_u32 s32, s32, s5
    s_lshl_b32 s40, s40, 6
    s_add_u32 s40, s40, {WS_F1}
    s_add_u32 s42, s32, {WS_PART}
    s_add_u32 s43, s32, {WS_X1}
    s_add_u32 s44, s32, {WS_H2}
    s_lshl_b32 s46, s52, 2
    s_add_u32 s46, s46, s{sW}
    s_lshl_b32 s46, s46, 2
    s_add_u32 s46, s46, {WS_F2}
    v_and_b32 v29, 15, v1
    v_lshlrev_b32 v29, 2, v29
    v_and_b32 v7, 7, v1
    v_lshlrev_b32 v7, 3, v7
    v_add_u32 v7, {3*32768}, v7
    s_lshl_b32 s5, s{sW}, 6
    v_add_u32 v6, s5, v7
    """)
    XU = 128; GA = 144; C1 = 160; SB = 176
    unpack(k, XU, 224, 8, M); unpack(k, GA, 232, 8, M); unpack(k, SB, 240, 8, M); unpack(k, C1, 248, 8, M)
    for j in range(16): k(f"v_add_f32 v{C1+j}, 1.0, v{C1+j}"); rnd(k, C1+j, C1+j)
    poll(k, 29, 40, 22)
    stamp(k)
    for g in range(8):
        for i in range(2): k(f"buffer_load_dwordx4 v[{32+8*g+4*i}:{35+8*g+4*i}], v28, {WS}, s42 offen offset:{3584*i} sc1")
        if g < 7: k(f"s_add_u32 s42, s42, {XB}")
    k.last_dma()
    A = 96; T = 112
    unpack(k, A, 32, 8, M)
    for g in range(1, 8):
        unpack(k, T, 32+8*g, 8, M)
        for j in range(8): k(pk('add', A+2*j, A+2*j, T+2*j))
    for j in range(16): rnd(k, A+j, A+j)
    for j in range(8): k(pk('mul', A+2*j, A+2*j, GA+2*j))
    for j in range(16): rnd(k, A+j, A+j)
    for j in range(8): k(pk('add', A+2*j, A+2*j, XU+2*j))
    for j in range(8): k(f"v_cvt_pk_bf16_f32 v{32+j}, v{A+2*j}, v{A+2*j+1}")
    for i in range(2): k(f"buffer_store_dwordx4 v[{32+4*i}:{35+4*i}], v28, {WS}, s43 offen offset:{3584*i} sc1")
    unpack(k, A, 32, 8, M)
    k(pk('add', 20, A, A+2))
    for j in range(2, 8): k(pk('add', 20, 20, A+2*j))
    k("v_add_f32 v20, v20, v21")
    red8(k, [20], [22])
    k(f"v_mul_f32 v20, {hx(1/112)}, v20\nv_cmp_gt_u32 vcc, 56, v1")
    for j in range(8):
        k(pk('add', 22, A+2*j, 20, mod=" op_sel_hi:[1,0] neg_lo:[0,1] neg_hi:[0,1]"))
        k(pk('mul', 24, 22, 22) if j == 0 else pk('fma', 24, 22, 22, 24))
    k("v_add_f32 v21, v24, v25\nv_cndmask_b32 v21, 0, v21, vcc")
    red8(k, [21], [22])
    k("ds_write_b64 v6, v[20:21]\ns_waitcnt lgkmcnt(0)\ns_barrier")
    for w in range(4): k(f"ds_read_b64 v[{T+2*w}:{T+2*w+1}], v7 offset:{64*w}")
    k(pk('add', 20, T, T+2)); k(pk('add', 22, T+4, T+6)); k(pk('add', 20, 20, 22))
    k(f"v_mul_f32 v20, 0.25, v20".replace("0.25", hx(0.25)))
    for w in range(4):
        k(f"v_sub_f32 v22, v{T+2*w}, v20")
        k("v_mul_f32 v23, v22, v22" if w == 0 else "v_fmac_f32 v23, v22, v22")
    k(f"v_fmac_f32 v21, {hx(112.0)}, v23\nv_mul_f32 v21, {hx(1/448)}, v21")
    k("\n".join(rstd_ops(21, 20)))
    for j in range(8): k(pk('add', A+2*j, A+2*j, 20, mod=" op_sel_hi:[1,0] neg_lo:[0,1] neg_hi:[0,1]"))
    for j in range(16): rnd(k, A+j, A+j)
    for j in range(8): k(pk('mul', A+2*j, A+2*j, 20, mod=" op_sel:[0,1] op_sel_hi:[1,1]"))
    for j in range(16): rnd(k, A+j, A+j)
    for j in range(8): k(pk('mul', A+2*j, A+2*j, C1+2*j))
    for j in range(16): rnd(k, A+j, A+j)
    for j in range(8): k(pk('add', A+2*j, A+2*j, SB+2*j))
    for j in range(8): k(f"v_cvt_pk_bf16_f32 v{40+j}, v{A+2*j}, v{A+2*j+1}")
    for i in range(2): k(f"buffer_store_dwordx4 v[{40+4*i}:{43+4*i}], v28, {WS}, s44 offen offset:{3584*i} sc1")
    k(f"s_load_dwordx2 s[28:29], s[0:1], 64\ns_load_dwordx2 s[30:31], s[0:1], 96")
    flag(k, 46, 22)
    k(f"s_cmp_ge_u32 s2, 224\ns_cbranch_scc1 {name}_fin\ns_barrier")
    stamp(k)
    vm = VQ(k)
    AH = 256; AR = 256+112; NR = 6
    k(f"""
    s_lshl_b32 s3, s39, 2
    s_add_u32 s3, s3, s{sW}
    s_lshl_b32 s40, s3, 6
    s_add_u32 s40, s40, {WS_F2}
    s_mul_i32 s44, s3, 28672
    s_add_u32 s44, s44, {WS_H2}
    s_mul_i32 s49, s3, 57344
    s_lshl_b32 s5, s38, 12
    s_add_u32 s49, s49, s5
    s_mul_i32 s50, s3, 3584
    s_add_u32 s50, s50, {WS_ST}
    s_lshl_b32 s5, s38, 8
    s_add_u32 s51, s50, s5
    v_lshlrev_b32 v2, 4, v1
    """)
    lanefields(k)
    k(f"""
    v_lshl_add_u32 v30, v24, 3, v26
    v_lshl_add_u32 v6, v30, 7, v29
    v_lshrrev_b32 v31, 1, v26
    v_lshl_add_u32 v6, v31, 6, v6
    v_xor_b32 v7, 64, v6
    v_add_u32 v8, 65536, v6
    v_add_u32 v9, 65536, v7
    v_add_u32 v10, 131072, v6
    v_add_u32 v11, 131072, v7
    v_lshlrev_b32 v18, 3, v25
    v_mul_u32_u24 v19, {7*256}, v24
    v_add_u32 v19, v19, v18
    v_mov_b32 v12, {hx(-2*KB*LOG2E)}
    v_mov_b32 v13, {hx(-2*KB*LOG2E)}
    v_and_b32 v23, 15, v1
    v_lshlrev_b32 v23, 2, v23
    """)
    Z2 = 32; Z1 = 64; ZP = 96
    loc = {(0, 0): (10, 0), (0, 1): (6, 0), (1, 0): (6, 32768), (1, 1): (8, 0)}
    mf = []; rd = []
    for part in range(2):
        for t in range(28):
            for ft in range(2):
                n = len(mf); A_ = AR+4*(n % 8); D = (Z2 if part == 0 else Z1)+16*ft
                b, o = loc[(part, t//14)]
                mf.append(f"v_mfma_f32_32x32x16_bf16 {r(D,16)}, {r(A_,4)}, {r(AH+4*t,4)}, {r(D,16) if t else 0}")
                rd.append([f"ds_read_b64_tr_b16 {r(A_+2*e,2)}, v{b+ft} offset:{o+(t%14)*2048+e*512}" for e in range(2)])
    for n in range(NR): k("\n".join(rd[n]))
    poll(k, 23, 40, 22)
    stamp(k)
    for t in range(28):
        if t % 4 == 0 and t: k("s_add_u32 s44, s44, 4096")
        vm(f"buffer_load_dwordx4 {r(AH+4*t,4)}, v2, {WS}, s44 offen offset:{(t%4)*1024}", 'h')
    srd(k, 12, 98, 99, 2048*4096); srd(k, 20, 100, 101, 896*896)
    k(f"""s_mov_b32 s40, {hx(-2*KB*LOG2E*KK)}
    s_mov_b32 s41, s40
    s_mov_b32 s42, 1.0
    s_mov_b32 s43, 1.0
    s_lshl_b32 s44, s3, 17
    s_mul_i32 s45, s{sW}, 57344
    s_lshl_b32 s5, s38, 12
    s_add_u32 s45, s45, s5
    s_add_u32 s45, s45, {WS_Z2}
    s_lshl_b32 s46, s{sW}, 12
    s_lshl_b32 s53, s{sW}, 13
    s_add_u32 s53, s53, 16384
    """)
    srd(k, 16, 28, 29, 4096); srd(k, 8, 30, 31, XB)
    if spf:
        k(f"""s_and_b32 s5, s2, 1
        s_mul_i32 s5, s5, 7
        s_sub_u32 s5, s38, s5
        s_lshl_b32 s5, s5, 2
        s_add_u32 s5, s5, s{sW}
        s_mul_i32 s5, s5, {19*1024}
        s_lshl_b32 s4, s39, 19
        s_add_u32 s4, s4, s5""")
    pf = [[f"buffer_load_dwordx4 v[252:255], v2, s[12:15], s4 offen offset:{(i%4)*1024} ; nowait"] + (["s_add_u32 s4, s4, 4096"] if i % 4 == 3 else []) for i in range(19)] if spf else []
    k(f"""
    v_lshlrev_b32 v30, 2, v24
    v_xor_b32 v30, v30, v25
    v_lshlrev_b32 v30, 4, v30
    v_lshl_add_u32 v112, v24, 9, v30
    v_xor_b32 v113, 128, v112
    v_lshrrev_b32 v30, 4, v1
    v_and_b32 v31, 15, v1
    v_xor_b32 v31, v31, v30
    v_lshlrev_b32 v31, 4, v31
    v_lshl_add_u32 v114, v30, 12, v31
    v_xor_b32 v115, 64, v114
    v_xor_b32 v116, 128, v114
    v_xor_b32 v117, 192, v114
    v_add_u32 v115, {15360}, v115
    v_add_u32 v116, {2*15360}, v116
    v_add_u32 v117, {3*15360}, v117
    v_lshrrev_b32 v30, 1, v28
    v_lshl_add_u32 v30, v27, 1, v30
    v_lshl_add_u32 v31, v24, 3, v26
    v_lshlrev_b32 v22, 2, v30
    v_xor_b32 v31, v31, v22
    v_lshlrev_b32 v31, 4, v31
    v_lshl_add_u32 v118, v30, 9, v31
    v_and_b32 v31, 1, v28
    v_lshl_add_u32 v118, v31, 3, v118
    v_and_b32 v31, 15, v25
    v_xor_b32 v31, v31, v24
    v_lshlrev_b32 v31, 4, v31
    v_lshl_add_u32 v119, v25, 8, v31
    v_add_u32 v119, s53, v119
    v_lshlrev_b32 v120, 1, v25
    s_lshl_b32 s5, s3, 6
    """)
    vm(f"buffer_load_ushort v120, v120, s[16:19], s5 offen", 'l')
    SL = 49152
    def zdma(st):
        sl = (st % 3)*SL
        return [(([f"s_add_u32 m0, s46, {sl}", f"s_add_u32 s33, s45, {st*4*57344}"] if ii == 0 else []) +
                 [f"buffer_load_dwordx4 v{112+(ii&1)}, {WS}, s33 offen offset:{ii*1024} lds"], st) for ii in range(4)]
    def wdma(st):
        sl = (st % 3)*SL
        return [(([f"s_add_u32 m0, s53, {sl+grp*4096}", f"s_add_u32 s33, s44, {st*256+grp*16*4096}"] if ii == 0 else []) +
                 [f"buffer_load_dwordx4 v{114+ii}, s[12:15], s33 offen offset:{ii*1024} lds"], st) for grp in range(2) for ii in range(4)]
    def emit(it):
        x, st = it
        for t in x[:-1]: k(t)
        vm(x[-1], st)
    seq = []
    for i in range(0, 32, 4): seq += interleave(gelu2(Z2+i, 14, None), gelu2(Z2+i+2, 20, None))
    seq += [pk('add', 16, Z2, Z2+2)] + [pk('add', 16, 16, Z2+i) for i in range(4, 32, 2)] + ["v_add_f32 v16, v16, v17"]
    seq += swap32_add(16, 14) + [f"v_mul_f32 v16, {hx(1/64)}, v16"]
    for i in range(0, 32, 2):
        seq += [pk('add', 14, Z2+i, 16, mod=" op_sel_hi:[1,0] neg_lo:[0,1] neg_hi:[0,1]"), pk('mul', 20, 14, 14) if i == 0 else pk('fma', 20, 14, 14, 20)]
    seq += ["v_add_f32 v17, v20, v21"] + swap32_add(17, 14)
    seq += [f"buffer_store_dwordx2 v[16:17], v18, {WS}, s51 offen sc1"]
    N = len(mf)
    for n in range(N):
        k(mf[n])
        if n+NR < N: k("\n".join(rd[n+NR]))
        if n >= 16 and n % 2 == 0 and pf:
            x = pf.pop(0); vm(x[0], 'p')
            for t in x[1:]: k(t)
        if n >= 58:
            for t in seq[:per]:
                if t.startswith('buffer_store'): vm(t, 's')
                else: k(t)
            seq = seq[per:]
        if n == N-NR: k("s_waitcnt lgkmcnt(0)\ns_barrier"); pend = wdma(0) + wdma(1) + wdma(2)
        if n > N-NR:
            for _ in range(2): emit(pend.pop(0))
    for t in seq:
        if t.startswith('buffer_store'): vm(t, 's')
        else: k(t)
    stamp(k)
    for i in range(0, 32, 4):
        x = interleave(gelu2(Z1+i, 14, ZP+i//2), gelu2(Z1+i+2, 20, ZP+i//2+1))
        k("\n".join(x[:12]))
        if pend: emit(pend.pop(0))
        k("\n".join(x[12:]))
        if pend: emit(pend.pop(0))
    assert not pend
    S = 64
    L = k.lab()
    k(f"s_mov_b32 s5, 0\n{L}:")
    for c in range(7): k(f"buffer_load_dwordx2 v[{S+2*c}:{S+2*c+1}], v19, {WS}, s50 offen offset:{256*c} sc1")
    k("s_add_u32 s5, s5, 1\ns_waitcnt vmcnt(0)")
    k(f"v_and_b32 v14, v{S}, v{S+1}")
    k(f"v_cmp_eq_u32 vcc, -1, v14")
    for c in range(1, 7): k(f"v_and_b32 v14, v{S+2*c}, v{S+2*c+1}\nv_cmp_eq_u32 s[34:35], -1, v14\ns_or_b64 vcc, vcc, s[34:35]")
    k(f"""s_cbranch_vccz {L}_ok
    s_cmp_lt_u32 s5, 0x20000
    s_cbranch_scc1 {L}
    {L}_ok:""")
    vm.q = []
    pass
    k(pk('add', 16, S, S+2))
    for c in range(2, 7): k(pk('add', 16, 16, S+2*c))
    k("\n".join(swap32_add(16, 14))); k(f"v_mul_f32 v16, {hx(1/14)}, v16")
    for c in range(7):
        k(f"v_sub_f32 v14, v{S+2*c}, v16")
        k("v_mul_f32 v15, v14, v14" if c == 0 else "v_fmac_f32 v15, v14, v14")
    k(f"v_fmac_f32 v17, {hx(64.0)}, v15")
    k("\n".join(swap32_add(17, 14))); k(f"v_mul_f32 v17, {hx(1/896)}, v17")
    k("\n".join(rstd_ops(17, 16)))
    k(f"s_add_u32 s33, s49, {WS_Z2}")
    for q in range(4):
        b = Z2+8*q
        for i in range(4): k(pk('add', b+2*i, b+2*i, 16, mod=" op_sel_hi:[1,0] neg_lo:[0,1] neg_hi:[0,1]"))
        for i in range(8): rnd(k, b+i, b+i)
        for i in range(4): k(pk('mul', b+2*i, b+2*i, 16, mod=" op_sel:[0,1] op_sel_hi:[1,1]"))
        for i in range(4): k(f"v_cvt_pk_bf16_f32 v{b+i}, v{b+2*i}, v{b+2*i+1}")
        k(f"buffer_store_dwordx4 v[{b}:{b+3}], v2, {WS}, s33 offen offset:{q*1024} sc1")
    k(f"""s_lshl_b32 s34, s38, 2
    s_add_u32 s34, s34, s{sW}
    s_lshl_b32 s34, s34, 6
    s_add_u32 s34, s34, {WS_F4}
    s_lshl_b32 s5, s39, 2
    s_add_u32 s35, s34, s5""")
    flag(k, 35, 22)
    k(f"""
    s_and_b32 s5, s2, 1
    s_mul_i32 s4, s5, 7
    s_sub_u32 s32, s38, s4
    s_lshl_b32 s5, s5, 2
    s_and_b32 s4, s2, 6
    s_lshl_b32 s4, s4, 1
    s_add_u32 s5, s5, s4
    s_add_u32 s5, s5, s39
    s_lshl_b32 s51, s5, 1
    s_add_u32 s51, s51, s37
    s_mov_b32 s52, s36
    s_mul_i32 s50, s{sW}, {8*896}
    s_lshl_b32 s5, s32, 7
    s_add_u32 s50, s50, s5
    s_lshl_b32 s32, s32, 3
    s_lshl_b32 s5, s52, 2
    s_add_u32 s32, s32, s5
    v_lshrrev_b32 v3, 3, v1
    v_mul_u32_u24 v3, 896, v3
    v_bfe_u32 v4, v1, 4, 1
    v_lshlrev_b32 v4, 2, v4
    v_and_b32 v5, 7, v1
    v_xor_b32 v4, v4, v5
    v_lshl_add_u32 v3, v4, 4, v3
    v_lshlrev_b32 v4, 4, v24
    s_lshl_b32 s40, s32, 9
    s_mul_i32 s5, s51, 28672
    s_add_u32 s40, s40, s5
    s_add_u32 s40, s40, {WS_X1}
    s_lshl_b32 s32, s32, 4
    s_add_u32 s41, s32, {WS_MOD+5*896}
    s_lshl_b32 s42, s{sW}, 10
    """)
    poll(k, 23, 34, 22)
    stamp(k)
    for st in range(3):
        for it in zdma(st): emit(it)
    XR = 124
    def odma(kh, half):
        return [([f"s_add_u32 m0, s42, {SL+(kh*56+half*28+4*j)*1024}", f"s_add_u32 s33, s50, {(kh*56+half*28+4*j)*8*896}",
                  f"buffer_load_dwordx4 v3, s[20:23], s33 offen lds"], 'o') for j in range(7)]
    XA = 12; XBB = 14; G = 32
    ARA = 256; ARB = 256+32
    mf = []; rd = []
    for st in range(16):
        sl = (st % 3)*SL
        for kp in range(8):
            for ft in range(2):
                n = len(mf); A_ = ARA+4*(n % 8); B = ARB+4*((n >> 1) % 4); D = G+16*ft
                mf.append(f"v_mfma_f32_32x32x16_bf16 {r(D,16)}, {r(A_,4)}, {r(B,4)}, {r(D,16) if n > 1 else 0}")
                x = []
                if ft == 0:
                    if kp == 0: x += [f"v_add_u32 v{XA}, {sl}, v118", f"v_xor_b32 v{XA+1}, 64, v{XA}", f"v_add_u32 v22, {sl}, v119"]
                    x += [f"v_xor_b32 v{XBB+kp}, {32*kp}, v22", f"ds_read_b128 {r(B,4)}, v{XBB+kp}"]
                x += [f"ds_read_b64_tr_b16 {r(A_+2*e,2)}, v{XA+e} offset:{(kp>>1)*4096+ft*2048+(kp&1)*256}" for e in range(2)]
                rd.append(x)
    N = len(mf); pend = []
    k(f"s_waitcnt vmcnt({vm.n(0)})\ns_barrier")
    for n in range(NR): k("\n".join(rd[n]))
    for b in range(2):
        vm(f"buffer_load_dwordx4 v[{XR+4*b}:{XR+4*b+3}], v2, {WS}, s40 offen offset:{b*1024}", 'l')
        vm(f"buffer_load_dwordx4 v[{XR+8+4*b}:{XR+8+4*b+3}], v4, {WS}, s41 offen offset:{b*32}", 'l')
    for n in range(N):
        k(mf[n])
        if (n+NR) % 16 == 0 and n+NR < N:
            st = (n+NR)//16
            if st < 15:
                while pend: emit(pend.pop(0))
            k(f"s_waitcnt vmcnt({vm.n(st)}) lgkmcnt(0)\ns_barrier")
            if st+2 < 16: pend += zdma(st+2) + wdma(st+2)
            if st == 14: pend += odma(0, 0)
            if st == 15: pend += odma(1, 0) + odma(0, 1) + odma(1, 1)
        if n+NR < N: k("\n".join(rd[n+NR]))
        if pend: emit(pend.pop(0))
    while pend: emit(pend.pop(0))
    stamp(k)
    k(f"v_lshlrev_b32 v120, 16, v120\ns_add_u32 s33, s49, {WS_U}")
    for q in range(4):
        b = G+8*q
        unpack(k, 64, ZP+4*q, 4, M)
        for i in range(8): rnd(k, b+i, b+i)
        for i in range(4): k(pk('add', b+2*i, b+2*i, 120, mod=" op_sel_hi:[1,0]"))
        for i in range(8): rnd(k, b+i, b+i)
        for i in range(4): k(pk('mul', b+2*i, b+2*i, 64+2*i))
        for i in range(4): k(f"v_cvt_pk_bf16_f32 v{b+i}, v{b+2*i}, v{b+2*i+1}")
        k(f"buffer_store_dwordx4 v[{b}:{b+3}], v2, {WS}, s33 offen offset:{q*1024} sc1")
    k(f"""s_lshl_b32 s5, s3, 4
    s_add_u32 s5, s5, s38
    s_lshl_b32 s5, s5, 2
    s_add_u32 s35, s5, {WS_F5}""")
    flag(k, 35, 22)
    k(f"""
    s_barrier
    s_lshl_b32 s5, s51, 4
    s_mul_i32 s4, s52, 7
    s_add_u32 s5, s5, s4
    s_lshl_b32 s5, s5, 2
    s_add_u32 s34, s5, {WS_F5}
    v_min_u32 v23, 6, v1
    v_lshlrev_b32 v23, 2, v23
    s_mul_i32 s44, s51, 57344
    s_mul_i32 s5, s52, 28672
    s_add_u32 s44, s44, s5
    s_add_u32 s44, s44, {WS_U}
    s_mul_i32 s49, s51, {32*896}
    s_add_u32 s49, s49, s32
    s_lshl_b32 s5, s52, 6
    v_xor_b32 v6, s5, v6
    s_mul_i32 s5, s52, 57344
    s_add_u32 s5, s5, {SL}
    v_add_u32 v6, s5, v6
    v_xor_b32 v7, 64, v6
    s_lshl_b32 s5, s{sW}, 12
    v_add_u32 v8, s5, v2
    v_xor_b32 v9, 8192, v8
    v_mul_u32_u24 v11, 896, v25
    v_add_u32 v11, v11, v4
    """)
    unpack(k, 80, XR, 8, M); unpack(k, 96, XR+8, 8, M)
    mf = []; rd = []
    for t in range(28):
        for ft in range(2):
            n = len(mf); A_ = AR+4*(n % 8); D = G+16*ft
            mf.append(f"v_mfma_f32_32x32x16_bf16 {r(D,16)}, {r(A_,4)}, {r(AH+4*t,4)}, {r(D,16) if t else 0}")
            rd.append([f"ds_read_b64_tr_b16 {r(A_+2*e,2)}, v{6+ft} offset:{t*2048+e*512}" for e in range(2)])
    for n in range(NR): k("\n".join(rd[n]))
    poll(k, 23, 34, 22)
    stamp(k)
    for t in range(28):
        if t % 4 == 0 and t: k("s_add_u32 s44, s44, 4096")
        k(f"buffer_load_dwordx4 {r(AH+4*t,4)}, v2, {WS}, s44 offen offset:{(t%4)*1024}")
    N = len(mf)
    for n in range(N):
        k(mf[n])
        if n+NR < N: k("\n".join(rd[n+NR]))
    for q in range(4): k(f"ds_write_b128 v8, v[{G+16+4*q}:{G+19+4*q}] offset:{q*1024}")
    k("s_waitcnt lgkmcnt(0)\ns_barrier")
    for q in range(4): k(f"ds_read_b128 v[{G+16+4*q}:{G+19+4*q}], v9 offset:{q*1024}")
    for b in range(2):
        c = G+8*b
        for i in range(4): k(pk('add', c+2*i, c+2*i, c+16+2*i))
        for i in range(8): rnd(k, c+i, c+i)
        for i in range(4): k(pk('mul', c+2*i, c+2*i, 96+8*b+2*i))
        for i in range(8): rnd(k, c+i, c+i)
        for i in range(4): k(pk('add', c+2*i, c+2*i, 80+8*b+2*i))
        for i in range(4): k(f"v_cvt_pk_bf16_f32 v{c+i}, v{c+2*i}, v{c+2*i+1}")
        k(f"buffer_store_dwordx4 v[{c}:{c+3}], v11, s[8:11], s49 offen offset:{b*32}")
    stamp_end(k, 1)
    k(f"{name}_fin:\n{name}_end:")
    return k
```

```python
from common import *
ZB = 2048*1792
KB = 0.7978845608028654; KK = 0.044715

def red8(k, xs, ts):
    for x in xs: k(f"v_add_f32_dpp v{x}, v{x}, v{x} row_ror:8 {DP}")
    for sw in ("v_permlane16_swap_b32", "v_permlane32_swap_b32"):
        for x, t in zip(xs, ts): k(f"v_mov_b32 v{t}, v{x}")
        for x, t in zip(xs, ts): k(f"{sw} v{x}, v{t}")
        for x, t in zip(xs, ts): k(f"v_add_f32 v{x}, v{x}, v{t}")
def swap32_add(x, t):
    return [f"v_mov_b32 v{t}, v{x}", "s_nop 1", f"v_permlane32_swap_b32 v{x}, v{t}", f"v_add_f32 v{x}, v{x}, v{t}"]
def rstd_ops(q, m):
    return [f"v_cvt_pk_bf16_f32 v{q}, 0, v{q}", f"v_cvt_pk_bf16_f32 v{m}, 0, v{m}", f"v_add_f32 v{q}, {hx(1e-5)}, v{q}",
            f"v_cvt_pk_bf16_f32 v{q}, 0, v{q}", f"v_sqrt_f32 v{q}, v{q}", f"v_cvt_pk_bf16_f32 v{q}, 0, v{q}", f"v_rcp_f32 v{q}, v{q}"]

def gen_p1(name, pf=True):
    k = Kern(name)
    stamp(k)
    k(f"""
    s_load_dwordx2 s[4:5], s[0:1], 0
    s_load_dwordx2 s[6:7], s[0:1], 112
    s_load_dwordx2 s[16:17], s[0:1], 48
    s_mov_b32 s30, 0xffff0000
    s_cmp_ge_u32 s2, 256
    s_cbranch_scc1 {name}_end
    v_lshrrev_b32 v1, 3, v0
    v_and_b32 v2, 7, v0
    v_lshlrev_b32 v3, 9, v1
    v_lshl_add_u32 v3, v2, 4, v3
    v_lshlrev_b32 v4, 4, v1
    v_mul_u32_u24 v5, 896, v2
    v_add_u32 v5, v5, v4
    s_lshr_b32 s3, s2, 2
    s_mul_i32 s3, s3, 28672
    s_and_b32 s31, s2, 3
    s_lshl_b32 s31, s31, 7
    s_add_u32 s3, s3, s31
    s_add_u32 s31, s3, {WS_PART}
    s_mul_i32 s32, s2, {8*896}
    s_waitcnt lgkmcnt(0)
    """)
    srd(k, 8, 6, 7, WS_Z1)
    srd(k, 12, 4, 5, XB)
    for g in range(8):
        k(f"buffer_load_dwordx4 v[{8+4*g}:{11+4*g}], v3, s[8:11], s31 offen")
        if g < 7: k(f"s_add_u32 s31, s31, {XB}")
    k(f"""buffer_load_dwordx4 v[40:43], v5, s[12:15], s32 offen
    buffer_load_dwordx4 v[44:47], v4, s[8:11], 0 offen offset:{WS_MOD+2*896}
    buffer_load_dwordx4 v[48:51], v4, s[8:11], 0 offen offset:{WS_MOD+3*896}
    buffer_load_dwordx4 v[52:55], v4, s[8:11], 0 offen offset:{WS_MOD+4*896}
    v_lshrrev_b32 v6, 6, v0
    v_lshlrev_b32 v6, 6, v6
    v_lshl_add_u32 v6, v2, 3, v6
    v_lshlrev_b32 v7, 3, v2
    s_add_u32 s33, s3, {WS_X1}
    s_add_u32 s34, s3, {WS_H2}
    """)
    if pf:
        srd(k, 20, 16, 17, 448*3584)
        k(f"""
        s_lshr_b32 s35, s2, 3
        s_mul_i32 s35, s35, {14*3584}
        s_and_b32 s36, s2, 1
        s_mul_i32 s36, s36, 896
        s_add_u32 s35, s35, s36
        v_mul_u32_u24 v78, 4682, v0
        v_lshrrev_b32 v78, 16, v78
        v_mul_u32_u24 v79, 14, v78
        v_sub_u32 v79, v0, v79
        v_mul_u32_u24 v78, 3584, v78
        v_lshl_add_u32 v78, v79, 7, v78
        v_cmp_lt_u32 vcc, 6, v79
        v_cndmask_b32 v79, 0, 1, vcc
        v_mul_u32_u24 v79, 896, v79
        v_add_u32 v78, v78, v79
        v_mov_b32 v79, 0x7ffffff0
        s_movk_i32 s36, 196
        v_cmp_gt_u32 vcc, s36, v0
        v_cndmask_b32 v78, v79, v78, vcc
        buffer_load_dword v79, v78, s[20:23], s35 offen
        """)
    A = 56; T = 64
    stamp(k)
    unpack(k, A, 8, 4, 30)
    stamp(k)
    for g in range(1, 8):
        unpack(k, T, 8+4*g, 4, 30)
        for j in range(4): k(f"v_pk_add_f32 v[{A+2*j}:{A+2*j+1}], v[{A+2*j}:{A+2*j+1}], v[{T+2*j}:{T+2*j+1}]")
    unpack(k, T, 44, 4, 30); unpack(k, 8, 40, 4, 30)
    for j in range(8):
        rnd(k, A+j, A+j); k(f"v_mul_f32 v{A+j}, v{A+j}, v{T+j}"); rnd(k, A+j, A+j)
        k(f"v_add_f32 v{A+j}, v{A+j}, v{8+j}"); rnd(k, A+j, A+j)
    for j in range(4): k(f"v_cvt_pk_bf16_f32 v{16+j}, v{A+2*j}, v{A+2*j+1}")
    k(f"buffer_store_dwordx4 v[16:19], v3, s[8:11], s33 offen sc1")
    k(f"v_add_f32 v20, v{A}, v{A+1}")
    for j in range(2, 8): k(f"v_add_f32 v20, v20, v{A+j}")
    red8(k, [20], [22])
    k(f"v_mul_f32 v20, {hx(1/64)}, v20")
    for j in range(8):
        k(f"v_sub_f32 v22, v{A+j}, v20")
        k("v_mul_f32 v21, v22, v22" if j == 0 else "v_fmac_f32 v21, v22, v22")
    red8(k, [21], [22])
    k("ds_write_b64 v6, v[20:21]")
    stamp(k)
    unpack(k, 24, 52, 4, 30); unpack(k, 32, 48, 4, 30)
    for j in range(8): k(f"v_add_f32 v{24+j}, 1.0, v{24+j}"); rnd(k, 24+j, 24+j)
    k("s_waitcnt lgkmcnt(0)\ns_barrier")
    for w in range(7): k(f"ds_read_b64 v[{T+2*w}:{T+2*w+1}], v7 offset:{64*w}")
    k(f"v_add_f32 v20, v{T}, v{T+2}\nv_add_f32 v21, v{T+1}, v{T+3}")
    for w in range(2, 7): k(f"v_add_f32 v20, v20, v{T+2*w}\nv_add_f32 v21, v21, v{T+2*w+1}")
    k(f"v_mul_f32 v20, {hx(1/7)}, v20")
    for w in range(7):
        k(f"v_sub_f32 v22, v{T+2*w}, v20")
        k("v_mul_f32 v23, v22, v22" if w == 0 else "v_fmac_f32 v23, v22, v22")
    k(f"v_fmac_f32 v21, {hx(64.0)}, v23\nv_mul_f32 v21, {hx(1/448)}, v21")
    k("\n".join(rstd_ops(21, 20)))
    for j in range(8):
        k(f"v_sub_f32 v{A+j}, v{A+j}, v20"); rnd(k, A+j, A+j)
        k(f"v_mul_f32 v{A+j}, v{A+j}, v21"); rnd(k, A+j, A+j)
        k(f"v_mul_f32 v{A+j}, v{A+j}, v{24+j}"); rnd(k, A+j, A+j)
        k(f"v_add_f32 v{A+j}, v{A+j}, v{32+j}")
    for j in range(4): k(f"v_cvt_pk_bf16_f32 v{40+j}, v{A+2*j}, v{A+2*j+1}")
    k(f"buffer_store_dwordx4 v[40:43], v3, s[8:11], s34 offen sc1")
    stamp_end(k, 2)
    k(f"{name}_end:")
    return k

def lanefields(k):
    k(f"""
    v_lshrrev_b32 v24, 5, v1
    v_and_b32 v25, 31, v1
    v_bfe_u32 v26, v1, 2, 2
    v_bfe_u32 v27, v1, 4, 1
    v_and_b32 v28, 3, v1
    v_and_b32 v31, 1, v28
    v_lshlrev_b32 v31, 1, v31
    v_lshrrev_b32 v28, 1, v28
    v_or_b32 v28, v28, v31
    v_lshlrev_b32 v29, 5, v27
    v_lshl_add_u32 v29, v28, 3, v29
    """)

class VQ:
    def __init__(s, k): s.k = k; s.q = []
    def __call__(s, text, tag): s.k(text); s.q.append(tag)
    def n(s, tag):
        last = max(i for i, t in enumerate(s.q) if t == tag)
        return len(s.q) - 1 - last

def gelu_ops(x, t, sC1, sC2, final_round):
    o = [f"v_cvt_pk_bf16_f32 v{x}, 0, v{x}", f"v_mul_f32 v{t}, v{x}, v{x}", f"v_fma_f32 v{t}, v{t}, s{sC2}, v{sC1}",
         f"v_mul_f32 v{t}, v{t}, v{x}", f"v_exp_f32 v{t}, v{t}", f"v_add_f32 v{t}, 1.0, v{t}", f"v_rcp_f32 v{t}, v{t}",
         f"v_mul_f32 v{x}, v{x}, v{t}"]
    if final_round: o.append(f"v_cvt_pk_bf16_f32 v{x}, 0, v{x}")
    return o
def interleave(*seqs):
    o = []
    for i in range(max(len(s) for s in seqs)):
        for s in seqs:
            if i < len(s): o.append(s[i])
    return o

AH = 256; AR = 256+112; NR = 6; NRING = 8
def gemm_emit(k, vm, mf, rd, fill, bar):
    N = len(mf)
    for n in range(NR):
        if n-NR in bar: k(bar[n-NR]())
        k("\n".join(rd[n]))
    for n in range(N):
        if n in (0, 1, 28, 56, 84): stamp(k)
        k(mf[n])
        if n in bar: k(bar[n]())
        if n+NR < N: k("\n".join(rd[n+NR]))
        for t in fill.get(n, []):
            if t.startswith('buffer_store'): vm(t, 's')
            elif t.startswith('buffer_load'): vm(t, 'p')
            else: k(t)

def gen_p2(name, pf=True, xo=0):
    k = Kern(name); vm = VQ(k)
    stamp(k)
    k(f"""
    s_load_dwordx4 s[16:19], s[0:1], 48
    s_load_dwordx2 s[6:7], s[0:1], 112
    v_and_b32 v1, 63, v0
    v_lshrrev_b32 v22, 6, v0
    s_cmp_ge_u32 s2, 224
    s_cbranch_scc1 {name}_end
    v_readfirstlane_b32 s40, v22
    s_and_b32 s3, s2, 7
    s_lshr_b32 s41, s2, 3
    s_mul_i32 s42, s41, 9363
    s_lshr_b32 s42, s42, 16
    s_mul_i32 s43, s42, 7
    s_sub_u32 s41, s41, s43
    s_mov_b32 s53, s41
    s_and_b32 s43, s3, 1
    s_mul_i32 s43, s43, 7
    s_add_u32 s41, s41, s43
    s_lshr_b32 s3, s3, 1
    s_xor_b32 s31, s3, {xo}
    s_lshl_b32 s31, s31, 2
    s_add_u32 s31, s31, s42
    s_lshl_b32 s3, s3, 2
    s_add_u32 s3, s3, s42
    s_lshl_b32 s3, s3, 2
    s_add_u32 s3, s3, s40
    s_mul_i32 s44, s3, 28672
    s_add_u32 s44, s44, {WS_H2}
    s_mul_i32 s45, s40, {8*3584}
    s_lshl_b32 s42, s41, 7
    s_add_u32 s45, s45, s42
    s_lshl_b32 s46, s40, 10
    s_mul_i32 s47, s3, 57344
    s_lshl_b32 s42, s41, 12
    s_add_u32 s47, s47, s42
    s_add_u32 s48, s47, {WS_Z2}
    s_add_u32 s47, s47, {WS_Z1}
    s_mul_i32 s49, s3, 3584
    s_add_u32 s49, s49, {WS_ST}
    s_lshl_b32 s42, s41, 8
    s_add_u32 s50, s49, s42
    v_lshlrev_b32 v2, 4, v1
    v_lshrrev_b32 v3, 3, v1
    v_mul_u32_u24 v3, 3584, v3
    v_bfe_u32 v4, v1, 4, 1
    v_lshlrev_b32 v4, 2, v4
    v_and_b32 v5, 7, v1
    v_xor_b32 v4, v4, v5
    v_lshl_add_u32 v3, v4, 4, v3
    s_waitcnt lgkmcnt(0)
    """)
    srd(k, 8, 6, 7, WS_U)
    srd(k, 12, 16, 17, 448*3584)
    srd(k, 20, 18, 19, 2048*4096)
    def hload(t):
        if t % 4 == 0 and t: k("s_add_u32 s44, s44, 4096")
        vm(f"buffer_load_dwordx4 {r(AH+4*t,4)}, v2, s[8:11], s44 offen offset:{(t%4)*1024}", 'h')
    def dma(part, half):
        for j in range(7):
            i = half*28 + 4*j
            k(f"s_add_u32 m0, s46, {part*57344+i*1024}\ns_add_u32 s42, s45, {i*8*3584+(1792 if part == 0 else 0)}")
            vm(f"buffer_load_dwordx4 v3, s[12:15], s42 offen lds", (part, half))
    dma(0, 0)
    for t in range(14): hload(t)
    dma(0, 1)
    for t in range(14, 28): hload(t)
    dma(1, 0); dma(1, 1)
    stamp(k)
    lanefields(k)
    k(f"""
    v_lshl_add_u32 v30, v24, 3, v26
    v_lshl_add_u32 v6, v30, 7, v29
    v_lshrrev_b32 v31, 1, v26
    v_lshl_add_u32 v6, v31, 6, v6
    v_xor_b32 v7, 64, v6
    v_add_u32 v8, 57344, v6
    v_add_u32 v9, 57344, v7
    v_lshlrev_b32 v10, 3, v25
    v_mul_u32_u24 v11, {7*256}, v24
    v_add_u32 v11, v11, v10
    v_mov_b32 v12, {hx(-2*KB*LOG2E)}
    s_mov_b32 s51, {hx(-2*KB*LOG2E*KK)}
    """)
    k(f"""
    s_lshl_b32 s31, s31, 19
    s_mul_i32 s53, s53, {600*128}
    s_add_u32 s31, s31, s53
    v_lshlrev_b32 v13, 7, v0
    """)
    Z2 = 32; Z1 = 64
    mf = []; rd = []
    for part in range(2):
        for t in range(28):
            for ft in range(2):
                n = len(mf); A = AR+4*(n % NRING); D = (Z2 if part == 0 else Z1)+16*ft
                mf.append(f"v_mfma_f32_32x32x16_bf16 {r(D,16)}, {r(A,4)}, {r(AH+4*t,4)}, {r(D,16) if t else 0}")
                rd.append([f"ds_read_b64_tr_b16 {r(A+2*e,2)}, v{6+2*part+ft} offset:{t*2048+e*512}" for e in range(2)])
    bar = {}
    for part in range(2):
        for half in range(2):
            bar[part*56+half*28-NR] = (lambda p=part, h=half: f"s_waitcnt vmcnt({vm.n((p, h))})\ns_barrier")
    seq = []
    for i in range(0, 32, 2): seq += interleave(gelu_ops(Z2+i, 14, 12, 51, True), gelu_ops(Z2+i+1, 15, 12, 51, True))
    seq += [f"v_add_f32 v16, v{Z2}, v{Z2+1}"] + [f"v_add_f32 v16, v16, v{Z2+i}" for i in range(2, 32)]
    seq += swap32_add(16, 14) + [f"v_mul_f32 v16, {hx(1/64)}, v16"]
    for i in range(32):
        seq += [f"v_sub_f32 v14, v{Z2+i}, v16", "v_mul_f32 v17, v14, v14" if i == 0 else "v_fmac_f32 v17, v14, v14"]
    seq += swap32_add(17, 14)
    seq += ["s_mov_b32 exec_hi, 0", f"buffer_store_dwordx2 v[16:17], v10, s[8:11], s50 offen sc1", "s_mov_b32 exec_hi, -1"]
    fill = {}
    per = 6; g = 59
    while seq and g < 111:
        fill[g] = seq[:per]; seq = seq[per:]; g += 1
    if pf:
        for i in range(3):
            fill.setdefault(30+8*i, []).extend([f"buffer_load_dword v{110+i}, v13, s[20:23], s31 offen", f"s_add_u32 s31, s31, {(256 if i < 1 else 88)*128}"])
    if any('exec' in x for f in fill.values() for x in f): raise Exception("exec change amid MFMA")
    gemm_emit(k, vm, mf, rd, fill, bar)
    for t in seq:
        if t.startswith('buffer_store'): vm(t, 's')
        else: k(t)
    stamp(k)
    for q in range(4):
        b = Z1+8*q
        for i in range(0, 8, 2): k("\n".join(interleave(gelu_ops(b+i, 14, 12, 51, False), gelu_ops(b+i+1, 15, 12, 51, False))))
        for i in range(4): k(f"v_cvt_pk_bf16_f32 v{b+i}, v{b+2*i}, v{b+2*i+1}")
        k(f"buffer_store_dwordx4 v[{b}:{b+3}], v2, s[8:11], s47 offen offset:{q*1024} sc1")
    stamp(k)
    S = 96
    L = k.lab()
    k(f"s_mov_b32 s52, 0\n{L}:")
    for c in range(7): k(f"buffer_load_dwordx2 v[{S+2*c}:{S+2*c+1}], v11, s[8:11], s49 offen offset:{256*c} sc1")
    k("s_waitcnt vmcnt(0)")
    k(f"v_cmp_ne_u32 vcc, -1, v{S}")
    for c in range(1, 14): k(f"v_cmp_ne_u32 s[54:55], -1, v{S+c}\ns_and_b64 vcc, vcc, s[54:55]")
    k(f"""s_add_u32 s52, s52, 1
    s_cmp_eq_u64 vcc, -1
    s_cbranch_scc1 {L}_ok
    s_cmp_lt_u32 s52, 0x40000
    s_cbranch_scc1 {L}
    {L}_ok:""")
    stamp(k)
    k(f"v_add_f32 v16, v{S}, v{S+2}\nv_add_f32 v17, v{S+1}, v{S+3}")
    for c in range(2, 7): k(f"v_add_f32 v16, v16, v{S+2*c}\nv_add_f32 v17, v17, v{S+2*c+1}")
    k("\n".join(swap32_add(16, 14))); k(f"v_mul_f32 v16, {hx(1/14)}, v16")
    for c in range(7):
        k(f"v_sub_f32 v14, v{S+2*c}, v16")
        k("v_mul_f32 v15, v14, v14" if c == 0 else "v_fmac_f32 v15, v14, v14")
    k(f"v_fmac_f32 v17, {hx(64.0)}, v15")
    k("\n".join(swap32_add(17, 14))); k(f"v_mul_f32 v17, {hx(1/896)}, v17")
    k("\n".join(rstd_ops(17, 16)))
    for q in range(4):
        b = Z2+8*q
        for i in range(8):
            k(f"v_sub_f32 v{b+i}, v{b+i}, v16"); rnd(k, b+i, b+i); k(f"v_mul_f32 v{b+i}, v{b+i}, v17")
        for i in range(4): k(f"v_cvt_pk_bf16_f32 v{b+i}, v{b+2*i}, v{b+2*i+1}")
        k(f"buffer_store_dwordx4 v[{b}:{b+3}], v2, s[8:11], s48 offen offset:{q*1024} sc1")
    stamp_end(k, 3)
    k(f"{name}_end:")
    return k

def gen_p3(name, pf=True):
    k = Kern(name); vm = VQ(k)
    stamp(k)
    SL = 49152
    k(f"""
    s_load_dwordx4 s[16:19], s[0:1], 56
    s_load_dwordx2 s[6:7], s[0:1], 112
    s_load_dwordx2 s[24:25], s[0:1], 72
    v_and_b32 v1, 63, v0
    v_lshrrev_b32 v22, 6, v0
    s_cmp_ge_u32 s2, 224
    s_cbranch_scc1 {name}_end
    v_readfirstlane_b32 s40, v22
    s_and_b32 s3, s2, 7
    s_lshr_b32 s41, s2, 3
    s_mul_i32 s42, s41, 9363
    s_lshr_b32 s42, s42, 16
    s_mul_i32 s43, s42, 7
    s_sub_u32 s41, s41, s43
    s_and_b32 s43, s3, 1
    s_mul_i32 s43, s43, 7
    s_add_u32 s41, s41, s43
    s_lshr_b32 s3, s3, 1
    s_lshl_b32 s3, s3, 2
    s_add_u32 s3, s3, s42
    s_mul_i32 s51, s42, {16*57344}
    s_lshl_b32 s3, s3, 2
    s_add_u32 s3, s3, s40
    s_lshl_b32 s44, s3, 17
    s_mul_i32 s45, s40, 57344
    s_lshl_b32 s42, s41, 12
    s_add_u32 s45, s45, s42
    s_add_u32 s45, s45, {WS_Z2}
    s_lshl_b32 s46, s40, 12
    s_lshl_b32 s47, s40, 13
    s_add_u32 s47, s47, 16384
    s_mul_i32 s48, s3, 57344
    s_add_u32 s48, s48, s42
    s_add_u32 s49, s48, {WS_U}
    s_add_u32 s48, s48, {WS_Z1}
    s_lshl_b32 s50, s3, 6
    s_mov_b32 s30, 0xffff0000
    """)
    lanefields(k)
    k(f"""
    v_lshlrev_b32 v30, 2, v24
    v_xor_b32 v30, v30, v25
    v_lshlrev_b32 v30, 4, v30
    v_lshl_add_u32 v2, v24, 9, v30
    v_xor_b32 v3, 128, v2
    v_lshrrev_b32 v30, 4, v1
    v_and_b32 v31, 15, v1
    v_xor_b32 v31, v31, v30
    v_lshlrev_b32 v31, 4, v31
    v_lshl_add_u32 v4, v30, 12, v31
    v_xor_b32 v5, 64, v4
    v_xor_b32 v6, 128, v4
    v_xor_b32 v7, 192, v4
    v_add_u32 v5, {15360}, v5
    v_add_u32 v6, {2*15360}, v6
    v_add_u32 v7, {3*15360}, v7
    s_waitcnt lgkmcnt(0)
    """)
    srd(k, 8, 6, 7, WS_U+ZB)
    srd(k, 12, 16, 17, 2048*4096)
    srd(k, 20, 18, 19, 4096)
    def dma(st):
        sl = (st % 3)*SL; it = []
        for ii in range(4):
            pre = [f"s_add_u32 m0, s46, {sl}", f"s_add_u32 s42, s45, {st*4*57344}"] if ii == 0 else []
            it.append(pre + [f"buffer_load_dwordx4 v{2+(ii&1)}, s[8:11], s42 offen offset:{ii*1024} lds"])
        for grp in range(2):
            for ii in range(4):
                pre = [f"s_add_u32 m0, s47, {sl+grp*4096}", f"s_add_u32 s42, s44, {st*256+grp*16*4096}"] if ii == 0 else []
                it.append(pre + [f"buffer_load_dwordx4 v{4+ii}, s[12:15], s42 offen offset:{ii*1024} lds"])
        return [(x, st) for x in it]
    def emit(it):
        x, st = it
        for t in x[:-1]: k(t)
        vm(x[-1], st)
    for it in dma(0): emit(it)
    if pf:
        srd(k, 32, 24, 25, 896*896)
        k(f"""
        s_mov_b32 s30, 0xffff0000
        s_lshl_b32 s42, s41, 12
        s_add_u32 s51, s51, s42
        s_add_u32 s51, s51, {WS_Z2}
        v_lshrrev_b32 v8, 5, v0
        v_mul_u32_u24 v8, 57344, v8
        v_and_b32 v9, 31, v0
        v_lshl_add_u32 v8, v9, 7, v8
        """.replace("s_mov_b32 s30, 0xffff0000", ""))
        vm(f"buffer_load_dword v92, v8, s[8:11], s51 offen", 'p')
        k(f"s_add_u32 s51, s51, {8*57344}")
        vm(f"buffer_load_dword v93, v8, s[8:11], s51 offen", 'p')
        k(f"s_lshr_b32 s51, s2, 3\ns_mul_i32 s51, s51, 28672\nv_lshlrev_b32 v95, 7, v0")
    for it in dma(1): emit(it)
    ZR = 64
    k(f"v_lshlrev_b32 v8, 4, v1\nv_lshlrev_b32 v9, 1, v25")
    for q in range(4): vm(f"buffer_load_dwordx4 v[{ZR+4*q}:{ZR+4*q+3}], v8, s[8:11], s48 offen offset:{q*1024}", 'l')
    vm(f"buffer_load_ushort v80, v9, s[20:23], s50 offen", 'l')
    k(f"""
    v_lshrrev_b32 v30, 1, v28
    v_lshl_add_u32 v30, v27, 1, v30
    v_lshl_add_u32 v31, v24, 3, v26
    v_lshlrev_b32 v23, 2, v30
    v_xor_b32 v31, v31, v23
    v_lshlrev_b32 v31, 4, v31
    v_lshl_add_u32 v10, v30, 9, v31
    v_and_b32 v31, 1, v28
    v_lshl_add_u32 v10, v31, 3, v10
    v_and_b32 v31, 15, v25
    v_xor_b32 v31, v31, v24
    v_lshlrev_b32 v31, 4, v31
    v_lshl_add_u32 v11, v25, 8, v31
    v_add_u32 v11, s47, v11
    """)
    XA = 12; XBB = 14
    G = 32
    ARA = 256; ARB = 256+32
    mf = []; rd = []
    for st in range(16):
        sl = (st % 3)*SL
        for kp in range(8):
            for ft in range(2):
                n = len(mf); A = ARA+4*(n % 8); B = ARB+4*((n >> 1) % 4); D = G+16*ft
                mf.append(f"v_mfma_f32_32x32x16_bf16 {r(D,16)}, {r(A,4)}, {r(B,4)}, {r(D,16) if n > 1 else 0}")
                x = []
                if ft == 0:
                    if kp == 0: x += [f"v_add_u32 v{XA}, {sl}, v10", f"v_xor_b32 v{XA+1}, 64, v{XA}", f"v_add_u32 v22, {sl}, v11"]
                    x += [f"v_xor_b32 v{XBB+kp}, {32*kp}, v22", f"ds_read_b128 {r(B,4)}, v{XBB+kp}"]
                x += [f"ds_read_b64_tr_b16 {r(A+2*e,2)}, v{XA+e} offset:{(kp>>1)*4096+ft*2048+(kp&1)*256}" for e in range(2)]
                rd.append(x)
    N = len(mf); pend = []
    stamp(k)
    k(f"s_waitcnt vmcnt({vm.n(0)})\ns_barrier")
    pend += dma(2)
    for n in range(NR): k("\n".join(rd[n]))
    for n in range(N):
        if n in (0, 1, 32, 64, 128, 192): stamp(k)
        k(mf[n])
        if n == 150 and pf: vm(f"buffer_load_dword v94, v95, s[32:35], s51 offen", 'p')
        if (n+NR) % 16 == 0 and n+NR < N:
            st = (n+NR)//16
            while pend: emit(pend.pop(0))
            k(f"s_waitcnt vmcnt({vm.n(st)}) lgkmcnt(0)\ns_barrier")
            if st+2 < 16: pend += dma(st+2)
        if n+NR < N: k("\n".join(rd[n+NR]))
        if pend: emit(pend.pop(0))
    stamp(k)
    k("v_lshlrev_b32 v80, 16, v80")
    for q in range(4):
        b = G+8*q
        unpack(k, 84, ZR+4*q, 4, 30)
        for i in range(8):
            rnd(k, b+i, b+i); k(f"v_add_f32 v{b+i}, v{b+i}, v80"); rnd(k, b+i, b+i); k(f"v_mul_f32 v{b+i}, v{b+i}, v{84+i}")
        for i in range(4): k(f"v_cvt_pk_bf16_f32 v{b+i}, v{b+2*i}, v{b+2*i+1}")
        k(f"buffer_store_dwordx4 v[{b}:{b+3}], v8, s[8:11], s49 offen offset:{q*1024} sc1")
    stamp_end(k, 4)
    k(f"{name}_end:")
    return k

def gen_p4(name):
    k = Kern(name); vm = VQ(k)
    stamp(k)
    k(f"""
    s_load_dwordx2 s[4:5], s[0:1], 72
    s_load_dwordx2 s[6:7], s[0:1], 112
    s_load_dwordx2 s[16:17], s[0:1], 96
    v_and_b32 v1, 63, v0
    v_lshrrev_b32 v22, 6, v0
    s_cmp_ge_u32 s2, 224
    s_cbranch_scc1 {name}_end
    v_readfirstlane_b32 s40, v22
    s_and_b32 s3, s2, 7
    s_lshr_b32 s41, s2, 3
    s_mul_i32 s42, s41, 9363
    s_lshr_b32 s42, s42, 16
    s_mul_i32 s43, s42, 7
    s_sub_u32 s41, s41, s43
    s_lshl_b32 s3, s3, 2
    s_add_u32 s3, s3, s42
    s_lshl_b32 s3, s3, 1
    s_and_b32 s42, s40, 1
    s_add_u32 s3, s3, s42
    s_lshr_b32 s43, s40, 1
    s_mul_i32 s44, s3, 57344
    s_mul_i32 s42, s43, 28672
    s_add_u32 s44, s44, s42
    s_add_u32 s44, s44, {WS_U}
    s_mul_i32 s45, s40, {8*896}
    s_lshl_b32 s42, s41, 7
    s_add_u32 s45, s45, s42
    s_lshl_b32 s46, s40, 10
    s_lshl_b32 s47, s41, 3
    s_lshl_b32 s42, s43, 2
    s_add_u32 s47, s47, s42
    s_lshl_b32 s48, s47, 9
    s_mul_i32 s42, s3, 28672
    s_add_u32 s48, s48, s42
    s_add_u32 s48, s48, {WS_X1}
    s_lshl_b32 s47, s47, 4
    s_mul_i32 s49, s3, {32*896}
    s_add_u32 s49, s49, s47
    s_mov_b32 s30, 0xffff0000
    v_lshlrev_b32 v2, 4, v1
    v_lshrrev_b32 v3, 3, v1
    v_mul_u32_u24 v3, 896, v3
    v_bfe_u32 v4, v1, 4, 1
    v_lshlrev_b32 v4, 2, v4
    v_and_b32 v5, 7, v1
    v_xor_b32 v4, v4, v5
    v_lshl_add_u32 v3, v4, 4, v3
    s_waitcnt lgkmcnt(0)
    """)
    srd(k, 8, 6, 7, WS_U+ZB)
    srd(k, 12, 4, 5, 896*896)
    srd(k, 20, 16, 17, XB)
    def hload(t):
        if t % 4 == 0 and t: k("s_add_u32 s44, s44, 4096")
        vm(f"buffer_load_dwordx4 {r(AH+4*t,4)}, v2, s[8:11], s44 offen offset:{(t%4)*1024}", 'h')
    def dma(half):
        for part in range(2):
            for j in range(7):
                i = part*56 + half*28 + 4*j
                k(f"s_add_u32 m0, s46, {i*1024}\ns_add_u32 s42, s45, {i*8*896}")
                vm(f"buffer_load_dwordx4 v3, s[12:15], s42 offen lds", half)
    dma(0)
    for t in range(14): hload(t)
    dma(1)
    for t in range(14, 28): hload(t)
    stamp(k)
    lanefields(k)
    k(f"v_lshlrev_b32 v10, 4, v24")
    XR = 64
    for b in range(2):
        vm(f"buffer_load_dwordx4 v[{XR+4*b}:{XR+4*b+3}], v2, s[8:11], s48 offen offset:{b*1024}", 'l')
        vm(f"buffer_load_dwordx4 v[{XR+8+4*b}:{XR+8+4*b+3}], v10, s[8:11], s47 offen offset:{WS_MOD+5*896-4096+b*32}".replace('s47', 's50'), 'l')
    k.ins.insert(len(k.ins)-4, Inst("s_add_u32 s50, s47, 4096"))
    k(f"""
    v_lshl_add_u32 v30, v24, 3, v26
    v_lshl_add_u32 v6, v30, 7, v29
    v_lshrrev_b32 v31, 1, v26
    v_xor_b32 v31, s43, v31
    v_lshl_add_u32 v6, v31, 6, v6
    s_mul_i32 s42, s43, 57344
    v_add_u32 v6, s42, v6
    v_xor_b32 v7, 64, v6
    s_lshl_b32 s42, s40, 12
    s_add_u32 s42, s42, 114688
    v_add_u32 v8, s42, v2
    v_xor_b32 v9, 8192, v8
    v_mul_u32_u24 v11, 896, v25
    v_add_u32 v11, v11, v10
    """)
    G = 32
    mf = []; rd = []
    for t in range(28):
        for ft in range(2):
            n = len(mf); A = AR+4*(n % NRING); D = G+16*ft
            mf.append(f"v_mfma_f32_32x32x16_bf16 {r(D,16)}, {r(A,4)}, {r(AH+4*t,4)}, {r(D,16) if t else 0}")
            rd.append([f"ds_read_b64_tr_b16 {r(A+2*e,2)}, v{6+ft} offset:{t*2048+e*512}" for e in range(2)])
    bar = {h*28-NR: (lambda h=h: f"s_waitcnt vmcnt({vm.n(h)})\ns_barrier") for h in range(2)}
    gemm_emit(k, vm, mf, rd, {}, bar)
    stamp(k)
    for q in range(4): k(f"ds_write_b128 v8, v[{G+16+4*q}:{G+19+4*q}] offset:{q*1024}")
    unpack(k, 80, XR, 8, 30); unpack(k, 96, XR+8, 8, 30)
    k("s_waitcnt lgkmcnt(0)\ns_barrier")
    for q in range(4): k(f"ds_read_b128 v[{G+16+4*q}:{G+19+4*q}], v9 offset:{q*1024}")
    for b in range(2):
        for i in range(8*b, 8*b+8):
            k(f"v_add_f32 v{G+i}, v{G+i}, v{G+16+i}"); rnd(k, G+i, G+i)
            k(f"v_mul_f32 v{G+i}, v{G+i}, v{96+i}"); rnd(k, G+i, G+i)
            k(f"v_add_f32 v{G+i}, v{G+i}, v{80+i}")
        for i in range(4): k(f"v_cvt_pk_bf16_f32 v{G+8*b+i}, v{G+8*b+2*i}, v{G+8*b+2*i+1}")
        k(f"buffer_store_dwordx4 v[{G+8*b}:{G+8*b+3}], v11, s[20:23], s49 offen offset:{b*32}")
    stamp_end(k, 5)
    k(f"{name}_end:")
    return k
```

```python
from common import *
import os

SLOT = 32768
def slot(st): return (st % 5) * SLOT
VL = 1; VD = 2; RQ, RK, RV, RW = 6, 7, 8, 9; XA = 10; VST = 18; VM = 19; VL0, VL1 = 20, 21; T0 = 22
RA = 32; RB = 160; RC = 224
AH = 256
AR = 256+112
AO = 256+144
AS = 256+176
NR = 6
NRING = 8
SQ, SK, SV, SW, SS = 8, 12, 16, 20, 24
sM8, sM4, sOQ, sOK, sOW, sOF, sOP, sMASK, sW, sC = 40, 41, 42, 43, 44, 45, 46, 47, 48, 49

def gen_k1(name, stop=None, pref=(12, 24), stamps=False, sps=(2,4,4,2), exp=None, mall=32, xmap=2, fused=True, pper=1, pfm=(1, 1), slp=0, touch=0, dly=0, nopf=0):
    k = Kern(name)
    import common
    def stamp(): common.stamp(k)
    stamp()
    vmq = []
    def vm(text, tag):
        k(text); vmq.append(tag)
    def wait_stage(st):
        last = max(i for i, t in enumerate(vmq) if t == ('d', st))
        n = len(vmq) - 1 - last
        return n
    def dma_items(st):
        items = []
        if st >= 44:
            part, half = divmod(st-44, 2)
            for j in range(7):
                it = []
                if st == 44 and j == 0:
                    it += [(x, None) for x in (f"v_lshrrev_b32 v{VD}, 3, v{VL}", f"v_mul_u32_u24 v{VD}, 3584, v{VD}", f"v_bfe_u32 v{VD+1}, v{VL}, 4, 1",
                           f"v_lshlrev_b32 v{VD+1}, 2, v{VD+1}", f"v_and_b32 v{VD+2}, 7, v{VL}", f"v_xor_b32 v{VD+1}, v{VD+1}, v{VD+2}",
                           f"v_lshl_add_u32 v{VD}, v{VD+1}, 4, v{VD}", f"s_mov_b32 s{SK}, s96", f"s_mov_b32 s{SK+1}, s97", f"s_mov_b32 s{SK+2}, {448*3584}",
                           f"s_lshr_b32 s{sM4}, s{sM4}, 2")]
                it += [(f"s_add_u32 m0, s{sM4}, {slot(st)+4096*j}", None), (f"s_add_u32 s{sOF}, s53, {(half*28+4*j)*8*3584+(1792 if part == 0 else 0)}", None),
                       (f"buffer_load_dwordx4 v{VD}, s[{SK}:{SK+3}], s{sOF} offen lds", ('d', st))]
                items.append(it)
            return items
        for grp in range(2):
            if st < 14:
                m0 = f"s_add_u32 m0, s{sM8}, {slot(st)+grp*4096}"
                so = f"s_add_u32 s{sOF}, s{sOQ}, {(32*st+16*grp)*(1024 if exp == 'lin' else 8192)}"; R = SQ; vs = [VD, VD+1, VD+2, VD+3]
            elif st < 30:
                s_ = (st-14) % 8
                m0 = f"s_add_u32 m0, s{sM4}, {slot(st)+grp*16384}"
                so = f"s_add_u32 s{sOF}, s{sOK}, {s_*32768+grp*16384}"
                if st < 22: R = SK; vs = [VD, VD+1, VD+2, VD+3]
                else: R = SV; vs = [VD, VD+1, VD, VD+1]
            else:
                j, q = divmod(st-30, 2)
                m0 = f"s_add_u32 m0, s{sM8}, {slot(st)+grp*4096}"
                so = f"s_add_u32 s{sOF}, s{sOW}, {(128*q+32*grp)*896+j*128}"; R = SW; vs = [VD, VD+1, VD+2, VD+3]
            for ii in range(4):
                it = []
                if ii == 0:
                    if grp == 0:
                        if st == 14:
                            it += [(f"v_accvgpr_read_b32 v{VD}, {r(AS)}", None)] + [(f"v_xor_b32 v{VD+x}, {32*x}, v{VD}", None) for x in (1, 2, 3)]
                        if st == 22:
                            it += [(f"v_accvgpr_read_b32 v{VD}, {r(AS+1)}", None), (f"v_xor_b32 v{VD+1}, 128, v{VD}", None)]
                        if st == 30:
                            it += [(f"v_accvgpr_read_b32 v{VD}, {r(AS+2)}", None)] + [(f"v_add_u32 v{VD+x}, {6144*x}, v{VD}", None) for x in (1, 2, 3)]
                    it += [(m0, None), (so, None)]
                it.append((f"buffer_load_dwordx4 v{vs[ii]}, s[{R}:{R+3}], s{sOF} offen offset:{ii*1024} lds", ('d', st)))
                items.append(it)
        return items
    def emit_item(it):
        for t, tag in it:
            if tag: vm(t, tag)
            else: k(t)

    k(f"""
    s_load_dwordx4 s[28:31], s[0:1], 8
    s_load_dwordx4 s[32:35], s[0:1], 24
    s_load_dwordx2 s[6:7], s[0:1], 112
    s_load_dwordx4 s[96:99], s[0:1], 48
    s_load_dwordx2 s[100:101], s[0:1], 72
    s_load_dwordx2 s[54:55], s[0:1], 0
    s_load_dwordx4 s[80:83], s[0:1], 80
    s_load_dwordx2 s[84:85], s[0:1], 104
    v_and_b32 v{VL}, 63, v0
    v_lshrrev_b32 v22, 6, v0
    s_cmp_ge_u32 s2, 256
    s_cbranch_scc1 {name}_end
    v_readfirstlane_b32 s{sW}, v22
    s_getpc_b64 s[92:93]
    {name}_pc:
    s_mov_b32 s94, {name}_end-{name}_pc
    s_mov_b32 s95, 0x20000
    s_lshr_b32 s5, s2, 3
    s_lshl_b32 s5, s5, 12
    v_lshlrev_b32 v23, 4, v0
    buffer_load_dwordx4 a[240:243], v23, s[92:95], s5 offen ; nowait
    XMAP
    s_mov_b32 s{sMASK}, 0xffff0000
    s_lshl_b32 s{sM8}, s{sW}, 13
    s_lshl_b32 s{sM4}, s{sW}, 12
    s_lshl_b32 s5, s3, 10
    s_add_u32 s{sOQ}, s5, s{sM8}
    s_lshl_b32 s5, s3, 20
    s_add_u32 s{sOK}, s5, {1536*512}
    s_lshl_b32 s50, s4, 13
    s_add_u32 s50, s50, s{sOK}
    s_add_u32 s{sOK}, s{sOK}, s{sM4}
    s_lshr_b32 s36, s{sW}, 1
    s_and_b32 s37, s{sW}, 1
    s_lshl_b32 s5, s3, 9
    s_lshl_b32 s38, s36, 8
    s_add_u32 s5, s5, s38
    s_lshl_b32 s38, s37, 6
    s_add_u32 s5, s5, s38
    s_mul_i32 s{sOW}, s5, 896
    s_mul_i32 s51, s3, {512*896}
    s_mul_i32 s5, s4, 14336
    s_add_u32 s51, s51, s5
    s_mul_i32 s{sOP}, s3, {XB}
    s_lshl_b32 s5, s4, 1
    s_add_u32 s5, s5, s37
    s_mul_i32 s5, s5, 28672
    s_add_u32 s{sOP}, s{sOP}, s5
    s_lshl_b32 s5, s36, 11
    s_add_u32 s{sOP}, s{sOP}, s5
    s_add_u32 s{sOP}, s{sOP}, {WS_PART}
    s_lshl_b32 s5, s4, 2
    s_add_u32 s5, s5, s{sW}
    s_mul_i32 s52, s5, {16*896}
    s_lshr_b32 s38, s2, 3
    s_mul_i32 s39, s38, 9363
    s_lshr_b32 s39, s39, 16
    s_mul_i32 s5, s39, 7
    s_sub_u32 s38, s38, s5
    s_and_b32 s5, s2, 1
    s_mul_i32 s5, s5, 7
    s_add_u32 s38, s38, s5
    s_and_b32 s5, s2, 6
    s_lshl_b32 s5, s5, 1
    s_add_u32 s39, s39, s5
    s_mul_i32 s53, s{sW}, {8*3584}
    s_lshl_b32 s5, s38, 7
    s_add_u32 s53, s53, s5
    v_lshlrev_b32 v23, 4, v{VL}
    s_lshl_b32 s5, s{sW}, 6
    v_xor_b32 v{VD}, s5, v23
    v_add_u32 v{VD+1}, {31744}, v{VD}
    v_add_u32 v{VD+2}, {2*31744}, v{VD}
    v_add_u32 v{VD+3}, {3*31744}, v{VD}
    s_waitcnt lgkmcnt(0)
    """.replace("XMAP", {1: "s_and_b32 s3, s2, 7\ns_lshr_b32 s4, s2, 3",
         2: "s_and_b32 s3, s2, 3\ns_lshl_b32 s3, s3, 1\ns_bfe_u32 s4, s2, 0x10003\ns_add_u32 s3, s3, s4\ns_bfe_u32 s4, s2, 0x10002\ns_lshl_b32 s4, s4, 4\ns_lshr_b32 s5, s2, 4\ns_add_u32 s4, s4, s5",
         4: "s_and_b32 s3, s2, 1\ns_lshl_b32 s3, s3, 2\ns_bfe_u32 s4, s2, 0x20003\ns_add_u32 s3, s3, s4\ns_bfe_u32 s4, s2, 0x20001\ns_lshl_b32 s4, s4, 3\ns_lshr_b32 s5, s2, 5\ns_add_u32 s4, s4, s5"}[xmap]))
    if exp == 'lin':
        k(f"s_mul_i32 s{sOQ}, s3, 458752\ns_lshl_b32 s5, s{sW}, 10\ns_add_u32 s{sOQ}, s{sOQ}, s5")
        for x in (1, 2, 3): k(f"v_add_u32 v{VD+x}, {x*3072}, v{VD}")
    XP = RB; WM = 224; SCR = 3*SLOT + 64*912
    k('s_mov_b32 s86, s52')
    if touch:
        srd(k, 92, 84, 85, 256)
        k("v_mov_b32 v10, 248\nbuffer_load_dword a244, v10, s[92:95], 0 offen sc1 ; nowait")
    srd(k, 92, 82, 83, 448*5376); srd(k, 88, 80, 81, 896)
    k(f"""
    s_sub_u32 s5, s2, 56
    s_cmp_lt_u32 s2, 56
    s_cselect_b32 s5, s2, s5
    s_movk_i32 s50, 2341
    s_cselect_b32 s50, 4682, s50
    s_cselect_b32 s52, 14, 28
    s_mul_i32 s51, s5, s50
    s_lshr_b32 s51, s51, 16
    s_mul_i32 s52, s52, s51
    s_sub_u32 s50, s5, s52
    s_cmp_lt_u32 s2, 56
    s_cselect_b32 s5, 0, 14
    s_add_u32 s50, s50, s5
    s_cmp_lt_u32 s2, 168
    s_cselect_b32 s94, s94, 0
    s_cselect_b32 s90, s90, 0
    s_mul_i32 s5, s51, {112*5376}
    s_lshl_b32 s52, s50, 7
    s_add_u32 s5, s5, s52
    v_lshrrev_b32 v10, 3, v0
    v_mul_u32_u24 v11, 5376, v10
    v_and_b32 v12, 7, v0
    v_lshl_add_u32 v11, v12, 4, v11
    v_mov_b32 v13, 0x7ffffff0
    v_cmp_gt_u32 vcc, 16, v10
    v_cndmask_b32 v14, v13, v11, vcc
    v_lshlrev_b32 v15, 2, v0
    s_mul_i32 s52, s51, 224
    """)
    vm(f"buffer_load_dword v240, v15, s[88:91], s52 offen", 'l')
    for i in range(4):
        vm(f"buffer_load_dwordx4 v[{WM+4*i}:{WM+4*i+3}], v{11 if i < 3 else 14}, s[92:95], s5 offen", 'l')
        if i < 3: k(f"s_add_u32 s5, s5, {32*5376}")
    srd(k, SS, 6, 7, WS_U+2048*1792)
    srd(k, SQ, 32, 33, 448*8192)
    srd(k, SK, 28, 29, 8 << 20)
    srd(k, SV, 30, 31, 8 << 20)
    srd(k, SW, 34, 35, 4096*896)
    k(f"""
    s_cmp_lt_u32 s2, 56
    s_cselect_b32 s5, s{sW}, 0
    s_cmp_eq_u32 s5, 1
    s_cselect_b64 vcc, -1, 0
    v_cndmask_b32 v16, v13, v23, vcc
    s_cmp_eq_u32 s{sW}, 0
    s_cselect_b64 vcc, -1, 0
    v_cndmask_b32 v19, v23, v13, vcc
    v_mov_b32 v244, -1
    v_mov_b32 v245, -1
    v_mov_b32 v246, -1
    v_mov_b32 v247, -1
    s_mul_i32 s5, s2, 4400
    s_add_u32 s5, s5, {WS_ST}
    """)
    for o in (0, 1024, 2048, 3072, 3376): vm(f"buffer_store_dwordx4 v[244:247], v16, s[{SS}:{SS+3}], s5 offen offset:{o} sc1", 's')
    srd(k, 88, 54, 55, XB)
    k("s_mov_b32 exec_hi, 0x00ffffff")
    for i in range(16):
        if i and i % 4 == 0: k(f"s_add_u32 s86, s86, {4*896}")
        vm(f"buffer_load_dwordx4 v[{XP+4*i}:{XP+4*i+3}], v23, s[88:91], s86 offen offset:{(i%4)*896}", 'l')
    k("s_mov_b32 exec_hi, -1")
    k(f"""
    v_lshrrev_b32 v24, 5, v{VL}
    v_and_b32 v25, 31, v{VL}
    v_bfe_u32 v26, v{VL}, 2, 2
    v_bfe_u32 v27, v{VL}, 4, 1
    v_and_b32 v28, 3, v{VL}
    v_lshlrev_b32 v29, 5, v27
    v_lshl_add_u32 v30, v28, 3, v29
    v_and_b32 v31, 1, v28
    v_lshlrev_b32 v31, 1, v31
    v_lshrrev_b32 v28, 1, v28
    v_or_b32 v28, v28, v31
    v_lshl_add_u32 v29, v28, 3, v29
    """)
    k(f"""
    v_mul_u32_u24 v{RQ}, {8192+64}, v26
    v_lshl_add_u32 v{RQ}, v24, 11, v{RQ}
    v_add_u32 v{RQ}, v{RQ}, v29
    s_lshl_b32 s5, s36, 9
    v_add_u32 v{RQ}, s5, v{RQ}
    v_and_b32 v31, 15, v25
    v_xor_b32 v31, v31, v24
    v_lshlrev_b32 v31, 4, v31
    v_lshl_add_u32 v{RK}, v25, 9, v31
    v_mul_u32_u24 v{RV}, {512+64}, v26
    v_lshl_add_u32 v{RV}, v24, 11, v{RV}
    v_add_u32 v{RV}, v{RV}, v30
    v_lshlrev_b32 v{RW}, 7, v26
    v_lshl_add_u32 v{RW}, v24, 9, v{RW}
    v_add_u32 v{RW}, v{RW}, v29
    v_lshrrev_b32 v31, 1, v26
    v_xor_b32 v31, s36, v31
    v_lshl_add_u32 v{RW}, v31, 6, v{RW}
    s_lshl_b32 s5, s36, 14
    v_add_u32 v{RW}, s5, v{RW}
    v_lshlrev_b32 v{VST}, 4, v25
    v_lshl_add_u32 v{VST}, v24, 9, v{VST}
    s_lshl_b32 s5, s37, 3
    v_xor_b32 v31, s5, v25
    v_xor_b32 v31, v31, v24
    v_lshlrev_b32 v31, 4, v31
    v_lshl_add_u32 v31, v24, 9, v31
    v_accvgpr_write_b32 {r(AS)}, v31
    v_lshlrev_b32 v31, 2, v24
    v_xor_b32 v31, v31, v25
    v_lshlrev_b32 v31, 4, v31
    v_lshl_add_u32 v31, v24, 9, v31
    v_accvgpr_write_b32 {r(AS+1)}, v31
    v_lshrrev_b32 v31, 3, v{VL}
    v_mul_u32_u24 v31, 896, v31
    v_lshlrev_b32 v27, 2, v27
    v_and_b32 v28, 7, v{VL}
    v_xor_b32 v28, v28, v27
    v_lshl_add_u32 v31, v28, 4, v31
    v_accvgpr_write_b32 {r(AS+2)}, v31
    s_mul_i32 s5, s{sW}, {16*912}
    s_add_u32 s5, s5, {3*SLOT}
    v_add_u32 v23, s5, v23
    s_mul_i32 s5, s37, {32*912}
    s_add_u32 s5, s5, {3*SLOT}
    v_mul_u32_u24 v22, 912, v25
    v_lshl_add_u32 v22, v24, 4, v22
    v_add_u32 v22, s5, v22
    s_mov_b32 s{sC}, {hx(LOG2E/16)}
    """)
    def pk(op, d, *src, mod=""):
        return f"v_pk_{op}_f32 v[{d}:{d+1}], " + ", ".join(x if isinstance(x, str) else f"v[{x}:{x+1}]" for x in src) + mod
    NEG = " op_sel_hi:[1,0] neg_lo:[0,1] neg_hi:[0,1]"
    def tred(S):
        for j in range(0, 8, 2): k(f"v_permlane32_swap_b32 v{S+j}, v{S+j+1}")
        for j in range(0, 8, 2): k(f"v_add_f32 v{S+j}, v{S+j}, v{S+j+1}")
        for j in (0, 4): k(f"v_permlane16_swap_b32 v{S+j}, v{S+j+2}")
        for j in (0, 4): k(f"v_add_f32 v{S+j}, v{S+j}, v{S+j+2}")
        for pat in ("quad_perm:[1,0,3,2]", "quad_perm:[2,3,0,1]", "row_half_mirror", "row_mirror"):
            for j in (0, 4): k(f"v_add_f32_dpp v{S+j}, v{S+j}, v{S+j} {pat} {DP}")
    LN = (0, 32, 16, 48); pfq = []
    def lnhalf(hf):
        S = 10; Q = 24
        for i in range(8):
            x = RA+8*(8*hf+i)
            unpack(k, x, XP+4*(8*hf+i), 4, sMASK)
            if pfq and pfm[0]: k(pfq.pop(0))
            k(pk('add', 20, x, x+2)); k(pk('add', 252, x+4, x+6)); k(pk('add', 20, 20, 252)); k(f"v_add_f32 v{S+i}, v20, v21")
            k(f"v_cndmask_b32 v{S+i}, 0, v{S+i}, vcc")
        tred(S)
        for j in (0, 4): k(f"v_mul_f32 v{S+j}, {hx(1/448)}, v{S+j}")
        k(f"v_readlane_b32 s88, v{S}, 0")
        for i in range(8):
            x = RA+8*(8*hf+i); sp = 88+2*(i & 1)
            if i < 7: k(f"v_readlane_b32 s{88+2*((i+1) & 1)}, v{S+4*((i+1) >> 2)}, {LN[(i+1) & 3]}")
            for j in range(4):
                k(pk('add', 252+2*(j & 1), x+2*j, f"s[{sp}:{sp+1}]", mod=NEG))
                k(pk('mul', 20, 252, 252) if j == 0 else pk('fma', 20, 252+2*(j & 1), 252+2*(j & 1), 20))
            k(f"v_add_f32 v{Q+i}, v20, v21\nv_cndmask_b32 v{Q+i}, 0, v{Q+i}, vcc")
        tred(Q)
        for j in (0, 4):
            q = Q+j; m = S+j
            k(f"v_mul_f32 v{q}, {hx(1/448)}, v{q}")
            k("\n".join([f"v_cvt_pk_bf16_f32 v{q}, 0, v{q}", f"v_cvt_pk_bf16_f32 v{m}, 0, v{m}", f"v_add_f32 v{q}, {hx(1e-5)}, v{q}",
                f"v_cvt_pk_bf16_f32 v{q}, 0, v{q}", f"v_sqrt_f32 v{q}, v{q}", f"v_cvt_pk_bf16_f32 v{q}, 0, v{q}", f"v_rcp_f32 v{q}, v{q}"]))
        k(f"v_readlane_b32 s88, v{S}, 0\nv_readlane_b32 s89, v{Q}, 0")
        for i in range(8):
            x = RA+8*(8*hf+i); sp = 88+2*(i & 1); sn = 88+2*((i+1) & 1)
            if i < 7: k(f"v_readlane_b32 s{sn}, v{S+4*((i+1) >> 2)}, {LN[(i+1) & 3]}\nv_readlane_b32 s{sn+1}, v{Q+4*((i+1) >> 2)}, {LN[(i+1) & 3]}")
            if pfq and pfm[1]: k(pfq.pop(0))
            for j in range(4): k(pk('add', x+2*j, x+2*j, f"s[{sp}:{sp+1}]", mod=NEG))
            for j in range(8): rnd(k, x+j, x+j)
            for j in range(4): k(pk('mul', x+2*j, x+2*j, f"s[{sp}:{sp+1}]", mod=" op_sel:[0,1] op_sel_hi:[1,1]"))
            for j in range(8): rnd(k, x+j, x+j)
    L32 = struct.unpack('<f', struct.pack('<f', LOG2E))[0]
    srd(k, 92, 84, 85, 256)
    k(f"""
    s_cmp_ge_u32 s2, 168
    s_cbranch_scc1 {name}_nog
    s_mov_b32 s88, {hx(-LOG2E)}
    s_mov_b32 s89, {hx(-(LOG2E-L32))}
    v_and_b32 v241, s{sMASK}, v240
    v_lshlrev_b32 v240, 16, v240
    """)
    def silu(c, a, b, d, e):
        return f"""v_mul_f32 v{a}, s88, v{c}
        v_fma_f32 v{b}, s88, v{c}, -v{a}
        v_fmac_f32 v{b}, s89, v{c}
        v_min_f32 v{a}, {hx(126.0)}, v{a}
        v_exp_f32 v{a}, v{a}
        v_mul_f32 v{b}, {hx(0.6931471805599453)}, v{b}
        v_fmac_f32 v{a}, v{a}, v{b}
        v_add_f32 v{a}, 1.0, v{a}
        v_rcp_f32 v{b}, v{a}
        v_mul_f32 v{d}, v{c}, v{b}
        v_fma_f32 v{e}, -v{d}, v{a}, v{c}
        v_fma_f32 v{c}, v{e}, v{b}, v{d}
        v_cvt_pk_bf16_f32 v{c}, 0, v{c}""".split("\n")
    for x, y in zip(silu(240, 10, 11, 12, 13), silu(241, 14, 15, 16, 17)): k(x); k(y)
    k(f"""v_lshlrev_b32 v10, 3, v0
    v_add_u32 v10, {SCR}, v10
    ds_write_b64 v10, v[240:241]
    v_lshrrev_b32 v11, 3, v0
    v_lshlrev_b32 v11, 2, v11
    v_add_u32 v11, {SCR}, v11
    s_waitcnt lgkmcnt(0)
    s_barrier""")
    stamp()
    for i in range(4): k(f"ds_read_b32 v{240+i}, v11 offset:{128*i}")
    A = 244
    for i in range(4):
        unpack(k, 24, WM+4*i, 4, sMASK)
        for j in range(8): k(f"v_mul_f32 v{A+j}, v{24+j}, v{240+i}" if i == 0 else f"v_fmac_f32 v{A+j}, v{24+j}, v{240+i}")
    for j in range(8): k(f"v_add_f32_dpp v{A+j}, v{A+j}, v{A+j} row_ror:8 {DP}")
    for sw in ("v_permlane16_swap_b32", "v_permlane32_swap_b32"):
        for j in range(8): k(f"v_mov_b32 v{24+j}, v{A+j}")
        for j in range(8): k(f"{sw} v{A+j}, v{24+j}")
        for j in range(8): k(f"v_add_f32 v{A+j}, v{A+j}, v{24+j}")
    k(f"""
    v_and_b32 v10, 7, v0
    v_lshlrev_b32 v10, 5, v10
    s_lshl_b32 s5, s{sW}, 8
    s_add_u32 s5, s5, {SCR+2048}
    v_add_u32 v10, s5, v10
    ds_write_b128 v10, v[{A}:{A+3}]
    ds_write_b128 v10, v[{A+4}:{A+7}] offset:16
    v_lshlrev_b32 v11, 2, v{VL}
    v_add_u32 v12, {SCR+2048}, v11
    s_waitcnt vmcnt(16) lgkmcnt(0)
    s_barrier
    s_cmp_lg_u32 s{sW}, 0
    s_cbranch_scc1 {name}_nog
    ds_read_b32 v13, v12
    ds_read_b32 v14, v12 offset:256
    ds_read_b32 v15, v12 offset:512
    ds_read_b32 v16, v12 offset:768
    s_mul_i32 s5, s51, 10752
    s_lshl_b32 s52, s50, 8
    s_add_u32 s5, s5, s52
    s_add_u32 s5, s5, {WS_XN}
    s_lshl_b32 s52, s50, 2
    s_add_u32 s52, s52, s51
    s_cmp_lt_u32 s2, 56
    s_cselect_b32 s51, 0, 72
    s_add_u32 s52, s52, s51
    v_add_f32 v13, v13, v14
    v_add_f32 v15, v15, v16
    v_add_f32 v13, v13, v15
    buffer_store_dword v13, v11, s[{SS}:{SS+3}], s5 offen sc1
    v_mov_b32 v14, 0
    v_mov_b32 v15, 1
    s_waitcnt vmcnt(0)
    buffer_store_byte v15, v14, s[92:95], s52 offen sc1
    s_branch {name}_join
    {name}_nog:
    s_waitcnt vmcnt(0)
    {name}_join:
    """)
    stamp()
    k(f"""
    s_mul_i32 s28, s2, 3
    s_add_u32 s28, s28, s{sW}
    s_sub_u32 s28, s28, 1
    s_max_i32 s28, s28, 0
    s_mul_i32 s29, s28, 4784
    s_mul_i32 s30, s28, 683
    s_lshr_b32 s30, s30, 16
    s_mul_i32 s31, s30, 96
    s_sub_u32 s31, s28, s31
    s_mul_i32 s31, s31, 2736
    s_lshl_b32 s30, s30, 20
    s_add_u32 s30, s30, s31
    s_add_u32 s30, s30, {1536*512}
    s_cmp_eq_u32 s{sW}, 0
    s_cbranch_scc1 {name}_nd""")
    if dly: k(f"s_cmp_lt_u32 s2, 56\ns_cbranch_scc1 {name}_nd")
    for st in range(3):
        for it in dma_items(st): emit_item(it)
    k(f"{name}_nd:\nv_cmp_gt_u32 vcc, 56, v{VL}")
    for R, so, offs in ((SQ, 29, (0, 1024, 2048, 3072, 3760)), (SK, 30, (0, 1024, 1712)), (SV, 30, (0, 1024, 1712)), (SW, 29, (0, 1024, 2048, 3072, 3760))):
        for o in offs: pfq.append(f"buffer_load_dwordx4 a[240:243], v19, s[{R}:{R+3}], s{so} offen offset:{o} ; nowait")
    if nopf: pfq.clear()
    lnhalf(0); lnhalf(1)
    assert not pfq
    stamp()
    L = k.lab()
    k(f"""
    s_mov_b32 s28, 0x7ffffff0
    v_lshlrev_b32 v12, 5, v{VL}
    v_add_u32 v12, {SCR+3072}, v12
    s_cmp_lg_u32 s{sW}, 0
    s_cbranch_scc1 {name}_sh
    s_sub_u32 s50, s2, 154
    s_cmp_lt_u32 s50, 42
    s_cselect_b32 s5, s50, 0
    s_cmp_ge_u32 s50, 14
    s_cselect_b32 s50, s5, 0
    v_min_u32 v10, 14, v{VL}
    v_cmp_eq_u32 vcc, 14, v10
    s_add_u32 s5, s50, 18
    s_cmp_lg_u32 s50, 0
    s_cselect_b32 s5, s5, 0
    v_mov_b32 v11, s5
    v_cndmask_b32 v10, v10, v11, vcc
    v_lshlrev_b32 v10, 2, v10
    s_mov_b32 s5, 0
    s_mov_b32 s51, 0x01010101
    {L}:
    buffer_load_dword v11, v10, s[92:95], 0 offen sc1
    s_add_u32 s5, s5, 1
    s_waitcnt vmcnt(0)
    v_cmp_ne_u32 vcc, s51, v11
    s_cbranch_vccz {L}_ok
    {f's_sleep {slp}' if slp else ''}
    s_cmp_lt_u32 s5, 0x20000
    s_cbranch_scc1 {L}
    {L}_ok:
    v_lshlrev_b32 v10, 4, v{VL}
    v_lshlrev_b32 v11, 2, v{VL}
    v_mov_b32 v13, 0x7ffffff0
    v_cmp_gt_u32 vcc, 56, v{VL}
    v_cndmask_b32 v14, v13, v10, vcc
    s_cmp_lg_u32 s50, 0
    s_cselect_b64 vcc, -1, 0
    v_cndmask_b32 v11, v13, v11, vcc
    s_lshl_b32 s51, s50, 8
    s_add_u32 s51, s51, {WS_XN}
    s_mov_b32 s5, {WS_XN}
    """)
    stamp()
    MP = RB
    for q in range(4):
        for c in range(4): k(f"buffer_load_dwordx4 v[{MP+16*q+4*c}:{MP+16*q+4*c+3}], v14, s[{SS}:{SS+3}], s5 offen offset:{896*c}")
        if q < 3: k(f"s_add_u32 s5, s5, 10752")
    for q in range(4):
        k(f"buffer_load_dword v{240+q}, v11, s[{SS}:{SS+3}], s51 offen sc1")
        if q < 3: k(f"s_add_u32 s51, s51, 10752")
    k(f"v_add_u32 v10, {SCR+3072}, v10\ns_mov_b32 exec_hi, 0x00ffffff")
    for j in range(0, 16, 2): k(pk('add', MP+j, MP+j, MP+16+j))
    for j in range(0, 16, 2): k(pk('add', MP+32+j, MP+32+j, MP+48+j)); k(pk('add', MP+j, MP+j, MP+32+j))
    for j in range(16):
        rnd(k, MP+j, MP+j)
        if j >= 8: k(f"v_add_f32 v{MP+j}, 1.0, v{MP+j}"); rnd(k, MP+j, MP+j)
    for c in range(4): k(f"ds_write_b128 v10, v[{MP+4*c}:{MP+4*c+3}] offset:{896*c}")
    k(f"""s_mov_b32 exec_hi, -1
    v_add_f32 v240, v240, v241
    v_add_f32 v242, v242, v243
    v_add_f32 v240, v240, v242
    v_cvt_pk_bf16_f32 v240, v240, v240
    v_lshlrev_b32 v11, 1, v{VL}
    v_cndmask_b32 v11, v13, v11, vcc
    s_cmp_lg_u32 s50, 0
    s_cselect_b32 s28, 252, s28
    s_lshl_b32 s51, s50, 7
    s_waitcnt lgkmcnt(0)
    s_barrier
    buffer_store_short v240, v11, s[{SS}:{SS+3}], s51 offen sc1""")
    vmq.clear(); vmq.append('fs')
    for st in range(3):
        for it in dma_items(st): emit_item(it)
    k(f"s_branch {name}_md\n{name}_sh:\ns_barrier\n{name}_md:")
    SA = WM; C1 = WM+8
    for j in range(2): k(f"ds_read_b128 v[{SA+4*j}:{SA+4*j+3}], v12 offset:{16*j}\nds_read_b128 v[{C1+4*j}:{C1+4*j+3}], v12 offset:{1792+16*j}")
    k("s_mov_b32 exec_hi, 0x00ffffff")
    for i in range(16):
        x = RA+8*i
        for j in range(4): k(pk('mul', x+2*j, x+2*j, C1+2*j))
        for j in range(8): rnd(k, x+j, x+j)
        for j in range(4): k(pk('add', x+2*j, x+2*j, SA+2*j))
        for j in range(4): k(f"v_cvt_pk_bf16_f32 v{x+j}, v{x+2*j}, v{x+2*j+1}")
        k(f"ds_write_b128 v23, v[{x}:{x+3}] offset:{i*912}")
    k("s_mov_b32 exec_hi, -1")
    k(f"s_waitcnt vmcnt({wait_stage(0)}) lgkmcnt(0)\ns_barrier")
    stamp()

    mf = []; rd = []; stage_first = {}
    def ring(n): return AR + 4*(n % NRING)
    def add(st, D, B, C, reads):
        n = len(mf)
        stage_first.setdefault(st, n)
        A = ring(n)
        mf.append(f"v_mfma_f32_32x32x16_bf16 {r(D,16)}, {r(A,4)}, {r(B,4)}, {r(D,16) if C else 0}")
        rd.append([x.replace('@0', r(A, 2)).replace('@1', r(A+2, 2)).replace('@', r(A, 4)) for x in reads])
    for st in range(14):
        for u in range(2):
            for dt in range(8):
                pre = [f"v_xor_b32 v{XA+dt}, {dt*64 | slot(st)}, v{RQ}"] if (u == 0 and dt < 4) else []
                add(st, RA+16*dt, AH+4*(2*st+u), st+u > 0, pre + [
                    f"ds_read_b64_tr_b16 @{e}, v{XA+(dt&3)} offset:{(4*u+e)*1024+(dt>>2)*256}" for e in range(2)])
    S0 = len(mf)
    for s_ in range(8):
        st = 14+s_
        for kt in range(2):
            for t in range(16):
                pre = [f"v_xor_b32 v{XA+t}, {32*t | slot(st)}, v{RK}"] if (kt == 0 and t < 8) else []
                add(st, RC+16*kt, RB+4*t, t > 0, pre + [f"ds_read_b128 @, v{XA+(t&7)} offset:{256*(t>>3)+kt*16384}"])
    P0 = len(mf)
    OT = [RB, RB+16, RB+32, RB+48, AO, AO+16, RC, RC+16]
    for s_ in range(8):
        st = 22+s_
        for u in range(4):
            for dt in range(8):
                pre = [f"v_xor_b32 v{XA+dt}, {dt*64 | slot(st)}, v{RV}"] if (u == 0 and dt < 4) else []
                add(st, OT[dt], RA+4*(4*s_+u), s_+u > 0, pre + [
                    f"ds_read_b64_tr_b16 @{e}, v{XA+(dt&3)} offset:{u*8192+e*4096+(dt>>2)*256}" for e in range(2)])
    W0 = len(mf)
    OWN, OTH = RA, RA+64
    WA = [RB, RB+16]; WT = RB+32
    for j in range(7):
        order = [(0, 0), (1, 0), (0, 1), (1, 1)] if j == 0 else [(0, 0), (0, 1), (1, 0), (1, 1)]
        for oi, (q, oth) in enumerate(order):
            st = 30+2*j+q
            xa = XA + (oi & 1)
            for u in range(8):
                pre = [f"v_xor_b32 v{xa}, {oth*16384 | slot(st)}, v{RW}"] if u == 0 else []
                add(st, WA[j & 1], (OTH if oth else OWN)+4*(8*q+u), oi+u > 0, pre + [
                    f"ds_read_b64_tr_b16 @{e}, v{xa} offset:{u*2048+e*1024}" for e in range(2)])
    N = len(mf)
    if exp == 'halfrd':
        for n in range(N):
            if (n < S0 or n >= W0) and n % 2: rd[n] = [x for x in rd[n] if not x.startswith('ds_')]
    if exp == 'pair':
        for n in range(0, N, 2):
            if (n < S0 or n >= W0): rd[n] = rd[n] + rd[n+1]; rd[n+1] = []
    fill = [[] for _ in range(N+1)]
    pre_mf = [[] for _ in range(N+1)]
    bar = {}
    for st in range(1, 44):
        g = stage_first[st] - NR
        iss = [st+3] if st+3 < (47 if fused else 44) else []
        if st == 1: iss = [3, 4]
        if st in (30, 31): iss = []
        bar[g] = (st, iss)
    fill[70] += ["@FIN"]
    fill[W0+20] += ["v_mov_b32 v30, 252", "buffer_load_dword v30, v30, s[92:95], 0 offen sc1"]
    fill[W0+39] += ["@CHK"]
    if mall:
        pl = [(98, 2048*4096, 8192, 8), (96, 448*3584, 1568, 2), (100, 896*896, 784, 1)]
        g = S0+20
        for p, n, per, cnt in pl:
            fill[g-1] += [f"s_mov_b32 s88, s{p}", f"s_mov_b32 s89, s{p+1}", f"s_mov_b32 s90, {n}", "s_mov_b32 s91, 0x20000",
                          f"s_lshl_b32 s5, s2, 2", f"s_add_u32 s5, s5, s{sW}", f"s_mul_i32 s52, s5, {per}", f"v_lshlrev_b32 v27, 4, v{VL}"]
            for c in range(cnt):
                fill[g] += [f"buffer_load_dwordx4 v[28:31], v27, s[88:91], s52 offen ; nowait", "s_add_u32 s52, s52, 1024"]
                g += mall
    if fused:
        g = W0+40
        fill[g] += [f"s_mov_b32 s{SQ}, s54", f"s_mov_b32 s{SQ+1}, s55", f"s_mov_b32 s{SQ+2}, {XB}", f"s_mul_i32 s5, s{sW}, 14",
                    f"v_lshrrev_b32 v26, 3, v{VL}", f"v_add_u32 v26, s5, v26"]
        fill[g+1] += [f"v_and_b32 v27, 7, v{VL}", f"v_cmp_gt_u32 vcc, 56, v{VL}", f"v_mov_b32 v31, 0x7ffffff0", f"v_lshlrev_b32 v28, 9, v26", f"v_lshl_add_u32 v28, v27, 4, v28"]
        fill[g+2] += [f"v_lshlrev_b32 v26, 4, v26", f"v_mul_u32_u24 v27, 896, v27", f"v_add_u32 v27, v27, v26", f"v_cndmask_b32 v26, v31, v26, vcc",
                      f"v_cndmask_b32 v27, v31, v27, vcc", f"v_cndmask_b32 v28, v31, v28, vcc"]
        fill[g+3] += [f"s_lshl_b32 s5, s4, 3", f"s_add_u32 s52, s5, s3", f"s_mul_i32 s5, s52, {8*896}"]
        for i in range(2):
            fill[g+4+i] += [f"buffer_load_dwordx4 v[{224+4*i}:{227+4*i}], v27, s[{SQ}:{SQ+3}], s5 offen offset:{112*i}"]
            for m in range(3):
                fill[g+6+3*i+m] += [f"buffer_load_dwordx4 v[{232+8*m+4*i}:{235+8*m+4*i}], v26, s[{SS}:{SS+3}], 0 offen offset:{WS_MOD+(2+m)*896+112*i}"]
    hreads = [f"ds_read_b128 {r(AH+4*t,4)}, v22 offset:{32*t}" for t in range(28)]
    for g in range(9): fill[g] += hreads[2+3*g:5+3*g]
    for t in range(16):
        dt, jj = t >> 1, t & 1
        fill[S0-5+t] += [f"v_cvt_pk_bf16_f32 v{RB+4*t+i}, v{RA+16*dt+8*jj+2*i}, v{RA+16*dt+8*jj+2*i+1}" for i in range(4)]
    def stile(kt):
        c = RC+16*(kt & 1)
        mx = [f"v_max_f32 v{VM}, v{c}, v{c+1}" if (kt == 0 and i == 0) else f"v_max3_f32 v{VM}, v{VM}, v{c+2*i}, v{c+2*i+1}" for i in range(8)]
        pk = [f"v_cvt_pk_bf16_f32 v{RA+8*kt+i}, v{c+2*i}, v{c+2*i+1}" for i in range(8)]
        return mx, pk
    for kt in range(15):
        mx, pk = stile(kt)
        g0 = S0+16*(kt+1)+3
        for i in range(8): fill[g0+i] += [mx[i], pk[i]]
    def expk(kap):
        o = []
        for i in range(4):
            p = RA+4*kap+i; a_, b_ = T0+2*(i & 1), T0+2*(i & 1)+1
            first = kap == 0 and i == 0
            o.append([f"v_lshlrev_b32 v{a_}, 16, v{p}", f"v_and_b32 v{b_}, s{sMASK}, v{p}",
                      f"v_fma_f32 v{a_}, v{a_}, s{sC}, v{VM}", f"v_fma_f32 v{b_}, v{b_}, s{sC}, v{VM}",
                      f"v_exp_f32 v{a_}, v{a_}", f"v_exp_f32 v{b_}, v{b_}",
                      f"v_add_f32 v{VL0}, {'0' if first else f'v{VL0}'}, v{a_}", f"v_add_f32 v{VL1}, {'0' if first else f'v{VL1}'}, v{b_}",
                      f"v_cvt_pk_bf16_f32 v{p}, v{a_}, v{b_}"])
        return o
    mx, pk = stile(15)
    pre_mf[P0] += mx + [f"v_mov_b32 v{T0}, v{VM}"] + pk[:2] + [f"v_permlane32_swap_b32 v{VM}, v{T0}", f"v_max_f32 v{VM}, v{VM}, v{T0}",
                   f"v_cvt_pk_bf16_f32 v{VM}, 0, v{VM}", f"v_mul_f32 v{VM}, s{sC}, v{VM}", f"v_sub_f32 v{VM}, 0, v{VM}"]
    for x in expk(0): pre_mf[P0] += x
    pre_mf[P0] += pk[2:]
    for kap in range(1, 32):
        for i, x in enumerate(expk(kap)):
            g = P0+8*(kap-1)+2*i
            fill[g] += x[:5]; fill[g+1] += x[5:]
    fill[W0-7] += [f"v_add_f32 v{VL0}, v{VL0}, v{VL1}", f"v_mov_b32 v{VL1}, v{VL0}"]
    fill[W0-6] += [f"v_permlane32_swap_b32 v{VL0}, v{VL1}", f"v_add_f32 v{VL0}, v{VL0}, v{VL1}", f"v_rcp_f32 v{VL0}, v{VL0}",
                   f"s_lshl_b32 s5, s{sW}, 14", f"s_add_u32 s5, s5, {3*SLOT}", f"v_lshlrev_b32 v{XA+4}, 4, v{VL}",
                   f"v_add_u32 v{XA+4}, s5, v{XA+4}", f"s_xor_b32 s5, s{sW}, 2"]
    fill[W0-6] += [f"s_lshl_b32 s5, s5, 14", f"s_add_u32 s5, s5, {3*SLOT}", f"v_lshlrev_b32 v{XA+5}, 4, v{VL}", f"v_add_u32 v{XA+5}, s5, v{XA+5}"]
    def norm(dt, pkd):
        o = []; c = OT[dt]
        for b in range(2):
            src = c+8*b
            if c >= 256:
                o += [f"v_accvgpr_read_b32 v{T0+i}, {r(src+i)}" for i in range(8)]; src = T0
            if pkd: o += [f"v_pk_mul_f32 v[{src+2*i}:{src+2*i+1}], v[{src+2*i}:{src+2*i+1}], v[{VL0}:{VL1}] op_sel_hi:[1,0]" for i in range(4)]
            else: o += [f"v_mul_f32 v{src+i}, v{src+i}, v{VL0}" for i in range(8)]
            d = OWN+8*dt+4*b
            o += [f"v_cvt_pk_bf16_f32 v{d+i}, v{src+2*i}, v{src+2*i+1}" for i in range(4)]
            o += [f"ds_write_b128 v{XA+4}, v[{d}:{d+3}] offset:{(2*dt+b)*1024}"]
        return o
    fill[W0-3] += norm(0, False)[:13]
    fill[W0-2] += norm(0, False)[13:]
    fill[W0-1] += norm(1, False)
    pre_mf[W0] += norm(2, True) + norm(3, True)
    seq = norm(4, False) + norm(5, False) + norm(6, False) + norm(7, False)
    per = (len(seq)+7)//8
    for g in range(8): fill[W0+g] += seq[per*g:per*(g+1)]
    X1 = W0+8; X2 = W0+14
    oreads = [f"ds_read_b128 v[{OTH+4*i}:{OTH+4*i+3}], v{XA+5} offset:{i*1024}" for i in range(16)]
    for g in range(4): fill[X1+1+g] += oreads[4*g:4*g+4]
    def wepi(j):
        c = WA[j & 1]; o = []
        for b in range(2):
            t = WT+4*b
            o += [f"v_cvt_pk_bf16_f32 v{t+i}, v{c+8*b+2*i}, v{c+8*b+2*i+1}" for i in range(4)]
            o += [f"buffer_store_dwordx4 v[{t}:{t+3}], v{VST}, s[{SS}:{SS+3}], s{sOP} offen offset:{b*1024} sc1"]
        o += [f"s_add_u32 s{sOP}, s{sOP}, 4096"]
        return o
    for j in range(6):
        e = wepi(j); g = W0+32*(j+1)+3
        fill[g] += e[:2]; fill[g+1] += e[2:5]; fill[g+2] += e[5:7]; fill[g+3] += e[7:]
    def dump(regs, n):
        srd(k, 52, 6, 7, 64 << 20, WS_DBG)
        k(f"s_lshl_b32 s5, s2, 2\ns_add_u32 s5, s5, s{sW}\ns_mul_i32 s5, s5, {n*256}\nv_lshlrev_b32 v{T0}, 2, v{VL}\ns_waitcnt vmcnt(0) lgkmcnt(0)\ns_nop 15")
        for i in range(n):
            k(f"buffer_store_dword v{regs+i}, v{T0}, s[52:55], s5 offen\ns_add_u32 s5, s5, 256")
            if i % 32 == 31: k("s_waitcnt vmcnt(0)")
        k(f"s_waitcnt vmcnt(0)\ns_branch {name}_end")
    k("\n".join(hreads[:2]))
    for n in range(NR): k("\n".join(rd[n]))
    pend = []
    for n in range(N):
        if stop == 'Q' and n == S0+12: dump(RB, 64); break
        if stop == 'S' and n == P0+8: dump(RA, 128); break
        if stop == 'O' and n == W0+16: dump(RA, 128); break
        if n in (((S0, P0, W0) if os.environ.get('K1ST') else (S0, W0,)) if fused else (16, S0, P0, W0-8, W0, W0+32, W0+128)): stamp()
        if pre_mf[n]: k("\n".join(pre_mf[n]))
        k(mf[n])
        if n in bar:
            st, iss = bar[n]
            lg = " lgkmcnt(0)" if st == 30 else (" lgkmcnt(2)" if st == 1 else "")
            assert not any(t == ('d', st) for it in pend for _, t in it)
            if exp in ('nodma', 'nowait'): k(f"s_waitcnt vmcnt(63){lg}\ns_barrier")
            else: k(f"s_waitcnt vmcnt({wait_stage(st)}){lg}\ns_barrier")
            for s_ in iss: pend += dma_items(s_)
        if n == X1: k("s_waitcnt lgkmcnt(0)\ns_barrier")
        if n == X2:
            k("s_waitcnt lgkmcnt(2)\ns_barrier")
            pend += dma_items(33) + dma_items(34)
        if n+NR < N: k("\n".join(rd[n+NR]))
        for t in fill[n]:
            if t == '@FIN':
                k(f"v_mov_b32 v30, s28\nv_mov_b32 v31, 1\ns_mov_b64 exec, 1\ns_waitcnt vmcnt({len(vmq)-1-vmq.index('fs')})")
                vm("buffer_atomic_add v31, v30, s[92:95], 0 offen sc1", 's')
                k("s_mov_b64 exec, -1")
            elif t == '@CHK':
                L = k.lab()
                k(f"""v_cmp_eq_u32 vcc, 28, v30
                s_mov_b32 s5, 0
                s_cbranch_vccnz {L}_ok
                {L}:
                v_mov_b32 v30, 252
                buffer_load_dword v30, v30, s[92:95], 0 offen sc1
                s_add_u32 s5, s5, 1
                s_waitcnt vmcnt(0)
                v_cmp_eq_u32 vcc, 28, v30
                s_cbranch_vccnz {L}_ok
                s_cmp_lt_u32 s5, 0x20000
                s_cbranch_scc1 {L}
                {L}_ok:""")
            elif t.startswith('buffer_store'):
                if exp != 'nost': vm(t, 's')
            elif t.startswith('buffer_load'): vm(t, 'l')
            else: k(t)
        sp = sps[0] if n < S0 else sps[1] if n < P0 else sps[2] if n < W0 else sps[3]
        if len(pend) > 8: sp = 1
        if pend and n % sp == (sp-1 if exp == 'pair' else 0):
            it = pend.pop(0)
            if exp == 'nodma': vmq.extend(t for _, t in it if t)
            else: emit_item(it)
    if fused:
        assert not pend
        k("s_waitcnt lgkmcnt(0)\ns_barrier")
    if not stop:
        for t in wepi(6)[:-1]: k(t)
    if fused:
        k.last_dma = lambda: [k(t) for it in dma_items(47) for t, _ in it]
        return k
    stamp_end(k, 1)
    k(f"{name}_end:")
    return k
```

```python
from common import *
from tail import red8, swap32_add, rstd_ops, lanefields, VQ, interleave, KB, KK, ZB
from k1 import gen_k1, SS, sW, sMASK
WS = f"s[{SS}:{SS+3}]"
def poll(k, va, so, tmp):
    L = k.lab()
    k(f"""s_mov_b32 s5, 0
    {L}:
    buffer_load_dword v{tmp}, v{va}, {WS}, s{so} offen sc1
    s_add_u32 s5, s5, 1
    s_waitcnt vmcnt(0)
    v_cmp_eq_u32 vcc, -1, v{tmp}
    s_cbranch_vccz {L}_ok
    s_cmp_lt_u32 s5, 0x20000
    s_cbranch_scc1 {L}
    {L}_ok:""")
def flag(k, so, z):
    k(f"v_mov_b32 v{z}, 0\ns_waitcnt vmcnt(0)\nbuffer_store_dword v{z}, v{z}, {WS}, s{so} offen sc1")
def pk(op, d, *src, mod=""):
    return f"v_pk_{op}_f32 v[{d}:{d+1}], " + ", ".join(x if isinstance(x, str) else f"v[{x}:{x+1}]" for x in src) + mod
def gelu2(x, t, final):
    o = [f"v_cvt_pk_bf16_f32 v{x}, 0, v{x}", f"v_cvt_pk_bf16_f32 v{x+1}, 0, v{x+1}", pk('mul', t, x, x), pk('fma', t, t, "s[40:41]", 12), pk('mul', t, t, x),
         f"v_exp_f32 v{t}, v{t}", f"v_exp_f32 v{t+1}, v{t+1}", pk('add', t, t, "s[42:43]"), f"v_rcp_f32 v{t}, v{t}", f"v_rcp_f32 v{t+1}, v{t+1}", pk('mul', x, x, t)]
    if final is None: o += [f"v_cvt_pk_bf16_f32 v{x}, 0, v{x}", f"v_cvt_pk_bf16_f32 v{x+1}, 0, v{x+1}"]
    else: o += [f"v_cvt_pk_bf16_f32 v{final}, v{x}, v{x+1}"]
    return o

def gen_mega(name, k1o={}, spf=False, per=5, nrs=11, zd=4, wst=(4, 7, 10, 12), np2=4, g0=12, wd=24):
    k = gen_k1(name, fused=True, **k1o)
    M = sMASK
    import common
    stamp = (lambda k: None) if os.environ.get('K1ST') else common.stamp
    if not os.environ.get('K1ST'): k.nst = min(getattr(k, 'nst', 0), 1)
    stamp(k)
    k(f"""
    s_lshl_b32 s5, s4, 1
    s_add_u32 s5, s5, s37
    s_lshl_b32 s5, s5, 3
    s_add_u32 s5, s5, s3
    s_lshl_b32 s5, s5, 1
    s_add_u32 s5, s5, s36
    s_lshl_b32 s5, s5, 2
    s_add_u32 s40, s5, {WS_F1}
    """)
    flag(k, 40, 22)
    k(f"""
    s_lshr_b32 s40, s52, 2
    s_mul_i32 s32, s40, 28672
    s_and_b32 s5, s52, 3
    s_lshl_b32 s5, s5, 7
    s_add_u32 s32, s32, s5
    s_lshl_b32 s40, s40, 6
    s_add_u32 s40, s40, {WS_F1}
    s_add_u32 s42, s32, {WS_PART}
    s_add_u32 s43, s32, {WS_X1}
    s_add_u32 s44, s32, {WS_H2}
    s_lshl_b32 s46, s52, 2
    s_add_u32 s46, s46, s{sW}
    s_lshl_b32 s46, s46, 2
    s_add_u32 s46, s46, {WS_F2}
    v_and_b32 v29, 15, v1
    v_lshlrev_b32 v29, 2, v29
    v_and_b32 v7, 7, v1
    v_lshlrev_b32 v7, 3, v7
    v_add_u32 v7, 94208, v7
    s_lshl_b32 s5, s{sW}, 6
    v_add_u32 v6, s5, v7
    """)
    XU = 128; GA = 144; C1 = 160; SB = 176
    unpack(k, XU, 224, 8, M); unpack(k, GA, 232, 8, M); unpack(k, SB, 240, 8, M); unpack(k, C1, 248, 8, M)
    for j in range(16): k(f"v_add_f32 v{C1+j}, 1.0, v{C1+j}"); rnd(k, C1+j, C1+j)
    poll(k, 29, 40, 22)
    stamp(k)
    for g in range(8):
        for i in range(2): k(f"buffer_load_dwordx4 v[{32+8*g+4*i}:{35+8*g+4*i}], v28, {WS}, s42 offen offset:{3584*i} sc1")
        if g < 7: k(f"s_add_u32 s42, s42, {XB}")
    k.last_dma()
    A = 96; T = 112
    unpack(k, A, 32, 8, M)
    for g in range(1, 8):
        unpack(k, T, 32+8*g, 8, M)
        for j in range(8): k(pk('add', A+2*j, A+2*j, T+2*j))
    for j in range(16): rnd(k, A+j, A+j)
    for j in range(8): k(pk('mul', A+2*j, A+2*j, GA+2*j))
    for j in range(16): rnd(k, A+j, A+j)
    for j in range(8): k(pk('add', A+2*j, A+2*j, XU+2*j))
    for j in range(8): k(f"v_cvt_pk_bf16_f32 v{32+j}, v{A+2*j}, v{A+2*j+1}")
    for i in range(2): k(f"buffer_store_dwordx4 v[{32+4*i}:{35+4*i}], v28, {WS}, s43 offen offset:{3584*i} sc1")
    unpack(k, A, 32, 8, M)
    k(pk('add', 20, A, A+2))
    for j in range(2, 8): k(pk('add', 20, 20, A+2*j))
    k("v_add_f32 v20, v20, v21")
    red8(k, [20], [22])
    k(f"v_mul_f32 v20, {hx(1/112)}, v20\nv_cmp_gt_u32 vcc, 56, v1")
    for j in range(8):
        k(pk('add', 22, A+2*j, 20, mod=" op_sel_hi:[1,0] neg_lo:[0,1] neg_hi:[0,1]"))
        k(pk('mul', 24, 22, 22) if j == 0 else pk('fma', 24, 22, 22, 24))
    k("v_add_f32 v21, v24, v25\nv_cndmask_b32 v21, 0, v21, vcc")
    red8(k, [21], [22])
    k("ds_write_b64 v6, v[20:21]\ns_waitcnt lgkmcnt(0)\ns_barrier")
    for w in range(4): k(f"ds_read_b64 v[{T+2*w}:{T+2*w+1}], v7 offset:{64*w}")
    k(pk('add', 20, T, T+2)); k(pk('add', 22, T+4, T+6)); k(pk('add', 20, 20, 22))
    k(f"v_mul_f32 v20, 0.25, v20".replace("0.25", hx(0.25)))
    for w in range(4):
        k(f"v_sub_f32 v22, v{T+2*w}, v20")
        k("v_mul_f32 v23, v22, v22" if w == 0 else "v_fmac_f32 v23, v22, v22")
    k(f"v_fmac_f32 v21, {hx(112.0)}, v23\nv_mul_f32 v21, {hx(1/448)}, v21")
    k("\n".join(rstd_ops(21, 20)))
    for j in range(8): k(pk('add', A+2*j, A+2*j, 20, mod=" op_sel_hi:[1,0] neg_lo:[0,1] neg_hi:[0,1]"))
    for j in range(16): rnd(k, A+j, A+j)
    for j in range(8): k(pk('mul', A+2*j, A+2*j, 20, mod=" op_sel:[0,1] op_sel_hi:[1,1]"))
    for j in range(16): rnd(k, A+j, A+j)
    for j in range(8): k(pk('mul', A+2*j, A+2*j, C1+2*j))
    for j in range(16): rnd(k, A+j, A+j)
    for j in range(8): k(pk('add', A+2*j, A+2*j, SB+2*j))
    for j in range(8): k(f"v_cvt_pk_bf16_f32 v{40+j}, v{A+2*j}, v{A+2*j+1}")
    for i in range(2): k(f"buffer_store_dwordx4 v[{40+4*i}:{43+4*i}], v28, {WS}, s44 offen offset:{3584*i} sc1")
    k(f"s_load_dwordx2 s[28:29], s[0:1], 64\ns_load_dwordx2 s[30:31], s[0:1], 96")
    flag(k, 46, 22)
    k(f"s_cmp_ge_u32 s2, 224\ns_cbranch_scc1 {name}_fin\ns_barrier")
    stamp(k)
    vm = VQ(k)
    AH = 256; AR = 256+112; NR = 6
    k(f"""
    s_lshl_b32 s3, s39, 2
    s_add_u32 s3, s3, s{sW}
    s_lshl_b32 s34, s3, 6
    s_add_u32 s34, s34, {WS_F2}
    s_mul_i32 s35, s3, 28672
    s_add_u32 s35, s35, {WS_H2}
    s_mul_i32 s49, s3, 57344
    s_lshl_b32 s5, s38, 12
    s_add_u32 s49, s49, s5
    s_mul_i32 s50, s3, 3584
    s_add_u32 s50, s50, {WS_ST}
    s_lshl_b32 s5, s38, 8
    s_add_u32 s51, s50, s5
    v_lshlrev_b32 v2, 4, v1
    """)
    lanefields(k)
    k(f"""
    v_lshl_add_u32 v30, v24, 3, v26
    v_lshl_add_u32 v6, v30, 7, v29
    v_lshrrev_b32 v31, 1, v26
    v_lshl_add_u32 v6, v31, 6, v6
    v_xor_b32 v7, 64, v6
    v_add_u32 v8, 65536, v6
    v_add_u32 v9, 65536, v7
    v_add_u32 v10, 131072, v6
    v_add_u32 v11, 131072, v7
    v_lshlrev_b32 v18, 3, v25
    v_mul_u32_u24 v19, {7*256}, v24
    v_add_u32 v19, v19, v18
    v_mov_b32 v12, {hx(-2*KB*LOG2E)}
    v_mov_b32 v13, {hx(-2*KB*LOG2E)}
    v_and_b32 v23, 15, v1
    v_lshlrev_b32 v23, 2, v23
    """)
    Z2 = 32; Z1 = 64; ZP = 96
    loc = {(0, 0): (10, 0), (0, 1): (6, 0), (1, 0): (6, 32768), (1, 1): (8, 0)}
    mf = []; rd = []
    for part in range(2):
        for t in range(28):
            for ft in range(2):
                n = len(mf); A_ = AR+4*(n % 8); D = (Z2 if part == 0 else Z1)+16*ft
                b, o = loc[(part, t//14)]
                mf.append(f"v_mfma_f32_32x32x16_bf16 {r(D,16)}, {r(A_,4)}, {r(AH+4*t,4)}, {r(D,16) if t else 0}")
                rd.append([f"ds_read_b64_tr_b16 {r(A_+2*e,2)}, v{b+ft} offset:{o+(t%14)*2048+e*512}" for e in range(2)])
    for n in range(NR): k("\n".join(rd[n]))
    srd(k, 12, 98, 99, 2048*4096); srd(k, 20, 100, 101, 896*896)
    k(f"""s_mov_b32 s40, {hx(-2*KB*LOG2E*KK)}
    s_mov_b32 s41, s40
    s_mov_b32 s42, 1.0
    s_mov_b32 s43, 1.0
    s_lshl_b32 s44, s3, 17
    s_mul_i32 s45, s{sW}, 57344
    s_lshl_b32 s5, s38, 12
    s_add_u32 s45, s45, s5
    s_add_u32 s45, s45, {WS_Z2}
    s_lshl_b32 s46, s{sW}, 12
    s_lshl_b32 s53, s{sW}, 13
    s_add_u32 s53, s53, 16384
    """)
    srd(k, 16, 28, 29, 4096); srd(k, 8, 30, 31, XB)
    if spf:
        k(f"""s_and_b32 s5, s2, 1
        s_mul_i32 s5, s5, 7
        s_sub_u32 s5, s38, s5
        s_lshl_b32 s5, s5, 2
        s_add_u32 s5, s5, s{sW}
        s_mul_i32 s5, s5, {19*1024}
        s_lshl_b32 s4, s39, 19
        s_add_u32 s4, s4, s5""")
    pf = [[f"buffer_load_dwordx4 v[252:255], v2, s[12:15], s4 offen offset:{(i%4)*1024} ; nowait"] + (["s_add_u32 s4, s4, 4096"] if i % 4 == 3 else []) for i in range(19)] if spf else []
    k(f"""
    v_lshlrev_b32 v30, 2, v24
    v_xor_b32 v30, v30, v25
    v_lshlrev_b32 v30, 4, v30
    v_lshl_add_u32 v112, v24, 9, v30
    v_xor_b32 v113, 128, v112
    v_lshrrev_b32 v30, 4, v1
    v_and_b32 v31, 15, v1
    v_xor_b32 v31, v31, v30
    v_lshlrev_b32 v31, 4, v31
    v_lshl_add_u32 v114, v30, 12, v31
    v_xor_b32 v115, 64, v114
    v_xor_b32 v116, 128, v114
    v_xor_b32 v117, 192, v114
    v_add_u32 v115, {15360}, v115
    v_add_u32 v116, {2*15360}, v116
    v_add_u32 v117, {3*15360}, v117
    v_lshrrev_b32 v30, 1, v28
    v_lshl_add_u32 v30, v27, 1, v30
    v_lshl_add_u32 v31, v24, 3, v26
    v_lshlrev_b32 v22, 2, v30
    v_xor_b32 v31, v31, v22
    v_lshlrev_b32 v31, 4, v31
    v_lshl_add_u32 v118, v30, 9, v31
    v_and_b32 v31, 1, v28
    v_lshl_add_u32 v118, v31, 3, v118
    v_and_b32 v31, 15, v25
    v_xor_b32 v31, v31, v24
    v_lshlrev_b32 v31, 4, v31
    v_lshl_add_u32 v119, v25, 8, v31
    v_add_u32 v119, s53, v119
    v_lshlrev_b32 v120, 1, v25
    s_lshl_b32 s5, s3, 6
    """)
    vm(f"buffer_load_ushort v120, v120, s[16:19], s5 offen", 'l')
    SL = 49152
    zsl = lambda st: ((st+1) % 4)*SL if zd == 4 else (st % 3)*SL
    wseq = list(range(3+np2, 3+nrs)) + [0, 1, 2]; nr2 = nrs-np2
    FR = list(range(256+144, 512, 4)) + list(range(144, 256, 4)) + list(range(256+48, 256+144, 4)) + list(range(64, 96, 4))
    def zdma(st):
        sl = zsl(st)
        return [(([f"s_add_u32 m0, s46, {sl}", f"s_add_u32 s33, s45, {st*4*57344}"] if ii == 0 else []) +
                 [f"buffer_load_dwordx4 v{112+(ii&1)}, {WS}, s33 offen offset:{ii*1024} lds"], st) for ii in range(4)]
    def wdma(st, i=None, sl=None):
        if sl is None: sl = (st % 3)*SL
        if i is not None: st = wseq[i]; sl = ((i-nr2) % 3)*SL
        return [(([f"s_add_u32 m0, s53, {sl+grp*4096}", f"s_add_u32 s33, s44, {st*256+grp*16*4096}"] if ii == 0 else []) +
                 [f"buffer_load_dwordx4 v{114+ii}, s[12:15], s33 offen offset:{ii*1024} lds"], st if i is None else ('w', i)) for grp in range(2) for ii in range(4)]
    def emit(it):
        x, st = it
        for t in x[:-1]: k(t)
        vm(x[-1], st)
    seq = []
    for i in range(0, 32, 4): seq += interleave(gelu2(Z2+i, 14, None), gelu2(Z2+i+2, 20, None))
    seq += [pk('add', 16, Z2, Z2+2)] + [pk('add', 16, 16, Z2+i) for i in range(4, 32, 2)] + ["v_add_f32 v16, v16, v17"]
    seq += swap32_add(16, 14) + [f"v_mul_f32 v16, {hx(1/64)}, v16"]
    for i in range(0, 32, 2):
        seq += [pk('add', 14, Z2+i, 16, mod=" op_sel_hi:[1,0] neg_lo:[0,1] neg_hi:[0,1]"), pk('mul', 20, 14, 14) if i == 0 else pk('fma', 20, 14, 14, 20)]
    seq += ["v_add_f32 v17, v20, v21"] + swap32_add(17, 14)
    seq += [f"buffer_store_dwordx2 v[16:17], v18, {WS}, s51 offen sc1"]
    N = len(mf)
    k(f"v_add_u32 v128, 81920, v119")
    for kp in range(1, 8): k(f"v_xor_b32 v{128+kp}, {32*kp}, v128")
    G2 = [-1000] + [g0+(wd+NR+1)*i for i in range(np2-1)]; p2 = []
    assert G2[-1]+wd < N-NR and g0 > NR
    for it in wdma(3, sl=81920): emit(it)
    poll(k, 23, 34, 22); vm.q = []
    stamp(k)
    for t in range(28):
        if t % 4 == 0 and t: k("s_add_u32 s35, s35, 4096")
        vm(f"buffer_load_dwordx4 {r(AH+4*t,4)}, v2, {WS}, s35 offen offset:{(t%4)*1024}", 'h')
    for kp in range(8): k(f"ds_read_b128 {r(FR[kp],4)}, v{128+kp}")
    for n in range(N):
        k(mf[n])
        if n in G2: p2 = wdma(3+G2.index(n), sl=81920)
        if n-wd in G2:
            i = G2.index(n-wd)
            k(f"s_waitcnt vmcnt({vm.n(3+i)})")
            for kp in range(8): k(f"ds_read_b128 {r(FR[8*i+kp],4)}, v{128+kp}")
        if n+NR < N: k("\n".join(rd[n+NR]))
        if p2: emit(p2.pop(0))
        if n >= 16 and n % 2 == 0 and pf:
            x = pf.pop(0); vm(x[0], 'p')
            for t in x[1:]: k(t)
        if n >= 58:
            for t in seq[:per]:
                if t.startswith('buffer_store'): vm(t, 's')
                else: k(t)
            seq = seq[per:]
        if n == N-NR: k("s_waitcnt lgkmcnt(0)\ns_barrier"); pend = wdma(0, 0) + wdma(0, 1) + wdma(0, 2)
        if n > N-NR:
            for _ in range(2): emit(pend.pop(0))
    for t in seq:
        if t.startswith('buffer_store'): vm(t, 's')
        else: k(t)
    stamp(k)
    for i in range(0, 32, 4):
        x = interleave(gelu2(Z1+i, 14, ZP+i//2), gelu2(Z1+i+2, 20, ZP+i//2+1))
        k("\n".join(x[:12]))
        if pend: emit(pend.pop(0))
        k("\n".join(x[12:]))
        if pend: emit(pend.pop(0))
    assert not pend
    S = 64
    L = k.lab()
    k(f"s_mov_b32 s5, 0\n{L}:")
    for c in range(7): k(f"buffer_load_dwordx2 v[{S+2*c}:{S+2*c+1}], v19, {WS}, s50 offen offset:{256*c} sc1")
    k("s_add_u32 s5, s5, 1\ns_waitcnt vmcnt(0)")
    k(f"v_and_b32 v14, v{S}, v{S+1}")
    k(f"v_cmp_eq_u32 vcc, -1, v14")
    for c in range(1, 7): k(f"v_and_b32 v14, v{S+2*c}, v{S+2*c+1}\nv_cmp_eq_u32 s[34:35], -1, v14\ns_or_b64 vcc, vcc, s[34:35]")
    k(f"""s_cbranch_vccz {L}_ok
    s_cmp_lt_u32 s5, 0x20000
    s_cbranch_scc1 {L}
    {L}_ok:""")
    vm.q = []
    pass
    k(pk('add', 16, S, S+2))
    for c in range(2, 7): k(pk('add', 16, 16, S+2*c))
    k("\n".join(swap32_add(16, 14))); k(f"v_mul_f32 v16, {hx(1/14)}, v16")
    for c in range(7):
        k(f"v_sub_f32 v14, v{S+2*c}, v16")
        k("v_mul_f32 v15, v14, v14" if c == 0 else "v_fmac_f32 v15, v14, v14")
    k(f"v_fmac_f32 v17, {hx(64.0)}, v15")
    k("\n".join(swap32_add(17, 14))); k(f"v_mul_f32 v17, {hx(1/896)}, v17")
    k("\n".join(rstd_ops(17, 16)))
    k(f"s_add_u32 s33, s49, {WS_Z2}")
    for q in range(4):
        b = Z2+8*q
        for i in range(4): k(pk('add', b+2*i, b+2*i, 16, mod=" op_sel_hi:[1,0] neg_lo:[0,1] neg_hi:[0,1]"))
        for i in range(8): rnd(k, b+i, b+i)
        for i in range(4): k(pk('mul', b+2*i, b+2*i, 16, mod=" op_sel:[0,1] op_sel_hi:[1,1]"))
        for i in range(4): k(f"v_cvt_pk_bf16_f32 v{b+i}, v{b+2*i}, v{b+2*i+1}")
        k(f"buffer_store_dwordx4 v[{b}:{b+3}], v2, {WS}, s33 offen offset:{q*1024} sc1")
    k(f"""s_lshl_b32 s34, s38, 2
    s_add_u32 s34, s34, s{sW}
    s_lshl_b32 s34, s34, 6
    s_add_u32 s34, s34, {WS_F4}
    s_lshl_b32 s5, s39, 2
    s_add_u32 s35, s34, s5""")
    flag(k, 35, 22)
    k(f"""
    s_and_b32 s5, s2, 1
    s_mul_i32 s4, s5, 7
    s_sub_u32 s32, s38, s4
    s_lshl_b32 s5, s5, 2
    s_and_b32 s4, s2, 6
    s_lshl_b32 s4, s4, 1
    s_add_u32 s5, s5, s4
    s_add_u32 s5, s5, s39
    s_lshl_b32 s51, s5, 1
    s_add_u32 s51, s51, s37
    s_mov_b32 s52, s36
    s_mul_i32 s50, s{sW}, {8*896}
    s_lshl_b32 s5, s32, 7
    s_add_u32 s50, s50, s5
    s_lshl_b32 s32, s32, 3
    s_lshl_b32 s5, s52, 2
    s_add_u32 s32, s32, s5
    v_lshrrev_b32 v3, 3, v1
    v_mul_u32_u24 v3, 896, v3
    v_bfe_u32 v4, v1, 4, 1
    v_lshlrev_b32 v4, 2, v4
    v_and_b32 v5, 7, v1
    v_xor_b32 v4, v4, v5
    v_lshl_add_u32 v3, v4, 4, v3
    v_lshlrev_b32 v4, 4, v24
    s_lshl_b32 s40, s32, 9
    s_mul_i32 s5, s51, 28672
    s_add_u32 s40, s40, s5
    s_add_u32 s40, s40, {WS_X1}
    s_lshl_b32 s32, s32, 4
    s_add_u32 s41, s32, {WS_MOD+5*896}
    s_lshl_b32 s42, s{sW}, 10
    """)
    vm.q = []
    for i in range(nr2):
        if i >= 3: k(f"s_waitcnt vmcnt({vm.n(('w', i))})")
        k(f"v_add_u32 v13, {((i-nr2) % 3)*SL}, v119")
        for kp in range(8): k(f"v_xor_b32 v{14+kp}, {32*kp}, v13\nds_read_b128 {r(FR[8*(np2+i)+kp],4)}, v{14+kp}")
        k("s_waitcnt lgkmcnt(0)")
        for it in wdma(0, i+3): emit(it)
    poll(k, 23, 34, 22)
    vm.q = []
    stamp(k)
    for st in range(zd):
        for it in zdma(st): emit(it)
    XR = 124
    def odma(kh, half):
        return [([f"s_add_u32 m0, s42, {SL+(kh*56+half*28+4*j)*1024}", f"s_add_u32 s33, s50, {(kh*56+half*28+4*j)*8*896}",
                  f"buffer_load_dwordx4 v3, s[20:23], s33 offen lds"], 'o') for j in range(7)]
    XA = 12; XBB = 14; G = 32
    ARA = 256; ARB = 256+32
    mf = []; rd = []
    for st in range(16):
        sl = (st % 3)*SL
        for kp in range(8):
            for ft in range(2):
                n = len(mf); A_ = ARA+4*(n % 8); B = ARB+4*((n >> 1) % 4); D = G+16*ft
                inreg = 3 <= st < 3+nrs
                if inreg: B = FR[8*(st-3)+kp]
                mf.append(f"v_mfma_f32_32x32x16_bf16 {r(D,16)}, {r(A_,4)}, {r(B,4)}, {r(D,16) if n > 1 else 0}")
                x = []
                if ft == 0:
                    if kp == 0: x += [f"v_add_u32 v{XA}, {zsl(st)}, v118", f"v_xor_b32 v{XA+1}, 64, v{XA}", f"v_add_u32 v22, {sl}, v119"]
                    if not inreg: x += [f"v_xor_b32 v{XBB+kp}, {32*kp}, v22", f"ds_read_b128 {r(B,4)}, v{XBB+kp}"]
                x += [f"ds_read_b64_tr_b16 {r(A_+2*e,2)}, v{XA+e} offset:{(kp>>1)*4096+ft*2048+(kp&1)*256}" for e in range(2)]
                rd.append(x)
    N = len(mf); pend = []
    k(f"s_waitcnt vmcnt({vm.n(0)})\ns_barrier")
    for n in range(NR): k("\n".join(rd[n]))
    for b in range(2):
        vm(f"buffer_load_dwordx4 v[{XR+4*b}:{XR+4*b+3}], v2, {WS}, s40 offen offset:{b*1024}", 'l')
        vm(f"buffer_load_dwordx4 v[{XR+8+4*b}:{XR+8+4*b+3}], v4, {WS}, s41 offen offset:{b*32}", 'l')
    for n in range(N):
        k(mf[n])
        if (n+NR) % 16 == 0 and n+NR < N:
            st = (n+NR)//16
            if st < 15:
                while pend: emit(pend.pop(0))
            k(f"s_waitcnt vmcnt({vm.n(st)}) lgkmcnt(0)\ns_barrier")
            if st+zd-1 < 16: pend += zdma(st+zd-1)
            if nrs < 10:
                if 3+nrs <= st+2 < 16: pend += wdma(st+2)
            elif st in wst and 3+nrs+wst.index(st) < 16: pend += wdma(3+nrs+wst.index(st))
            if st == 14: pend += odma(0, 0)
            if st == 15: pend += odma(1, 0) + odma(0, 1) + odma(1, 1)
        if n+NR < N: k("\n".join(rd[n+NR]))
        if pend: emit(pend.pop(0))
    while pend: emit(pend.pop(0))
    stamp(k)
    k(f"v_lshlrev_b32 v120, 16, v120\ns_add_u32 s33, s49, {WS_U}")
    for q in range(4):
        b = G+8*q
        unpack(k, 64, ZP+4*q, 4, M)
        for i in range(8): rnd(k, b+i, b+i)
        for i in range(4): k(pk('add', b+2*i, b+2*i, 120, mod=" op_sel_hi:[1,0]"))
        for i in range(8): rnd(k, b+i, b+i)
        for i in range(4): k(pk('mul', b+2*i, b+2*i, 64+2*i))
        for i in range(4): k(f"v_cvt_pk_bf16_f32 v{b+i}, v{b+2*i}, v{b+2*i+1}")
        k(f"buffer_store_dwordx4 v[{b}:{b+3}], v2, {WS}, s33 offen offset:{q*1024} sc1")
    k(f"""s_lshl_b32 s5, s3, 4
    s_add_u32 s5, s5, s38
    s_lshl_b32 s5, s5, 2
    s_add_u32 s35, s5, {WS_F5}""")
    flag(k, 35, 22)
    k(f"""
    s_barrier
    s_lshl_b32 s5, s51, 4
    s_mul_i32 s4, s52, 7
    s_add_u32 s5, s5, s4
    s_lshl_b32 s5, s5, 2
    s_add_u32 s34, s5, {WS_F5}
    v_min_u32 v23, 6, v1
    v_lshlrev_b32 v23, 2, v23
    s_mul_i32 s44, s51, 57344
    s_mul_i32 s5, s52, 28672
    s_add_u32 s44, s44, s5
    s_add_u32 s44, s44, {WS_U}
    s_mul_i32 s49, s51, {32*896}
    s_add_u32 s49, s49, s32
    s_lshl_b32 s5, s52, 6
    v_xor_b32 v6, s5, v6
    s_mul_i32 s5, s52, 57344
    s_add_u32 s5, s5, {SL}
    v_add_u32 v6, s5, v6
    v_xor_b32 v7, 64, v6
    s_lshl_b32 s5, s{sW}, 12
    v_add_u32 v8, s5, v2
    v_xor_b32 v9, 8192, v8
    v_mul_u32_u24 v11, 896, v25
    v_add_u32 v11, v11, v4
    """)
    unpack(k, 80, XR, 8, M); unpack(k, 96, XR+8, 8, M)
    mf = []; rd = []
    for t in range(28):
        for ft in range(2):
            n = len(mf); A_ = AR+4*(n % 8); D = G+16*ft
            mf.append(f"v_mfma_f32_32x32x16_bf16 {r(D,16)}, {r(A_,4)}, {r(AH+4*t,4)}, {r(D,16) if t else 0}")
            rd.append([f"ds_read_b64_tr_b16 {r(A_+2*e,2)}, v{6+ft} offset:{t*2048+e*512}" for e in range(2)])
    for n in range(NR): k("\n".join(rd[n]))
    poll(k, 23, 34, 22)
    stamp(k)
    for t in range(28):
        if t % 4 == 0 and t: k("s_add_u32 s44, s44, 4096")
        k(f"buffer_load_dwordx4 {r(AH+4*t,4)}, v2, {WS}, s44 offen offset:{(t%4)*1024}")
    N = len(mf)
    for n in range(N):
        k(mf[n])
        if n+NR < N: k("\n".join(rd[n+NR]))
    for q in range(4): k(f"ds_write_b128 v8, v[{G+16+4*q}:{G+19+4*q}] offset:{q*1024}")
    k("s_waitcnt lgkmcnt(0)\ns_barrier")
    for q in range(4): k(f"ds_read_b128 v[{G+16+4*q}:{G+19+4*q}], v9 offset:{q*1024}")
    for b in range(2):
        c = G+8*b
        for i in range(4): k(pk('add', c+2*i, c+2*i, c+16+2*i))
        for i in range(8): rnd(k, c+i, c+i)
        for i in range(4): k(pk('mul', c+2*i, c+2*i, 96+8*b+2*i))
        for i in range(8): rnd(k, c+i, c+i)
        for i in range(4): k(pk('add', c+2*i, c+2*i, 80+8*b+2*i))
        for i in range(4): k(f"v_cvt_pk_bf16_f32 v{c+i}, v{c+2*i}, v{c+2*i+1}")
        k(f"buffer_store_dwordx4 v[{c}:{c+3}], v11, s[8:11], s49 offen offset:{b*32}")
    stamp_end(k, 1)
    k(f"{name}_fin:\n{name}_end:")
    return k
```

```python
from common import *
import os

SLOT = 32768
def slot(st): return (st % 5) * SLOT
VL = 1; VD = 2; RQ, RK, RV, RW = 6, 7, 8, 9; XA = 10; VST = 18; VM = 19; VL0, VL1 = 20, 21; T0 = 22
RA = 32; RB = 160; RC = 224
AH = 256
AR = 256+112
AO = 256+144
AS = 256+176
NR = 6
NRING = 8
SQ, SK, SV, SW, SS = 8, 12, 16, 20, 24
sM8, sM4, sOQ, sOK, sOW, sOF, sOP, sMASK, sW, sC = 40, 41, 42, 43, 44, 45, 46, 47, 48, 49

def gen_k1(name, stop=None, pref=(12, 24), stamps=False, sps=(2,4,4,2), exp=None, mall=32, xmap=2, fused=True, pper=1, pfm=(0, 1), slp=0, touch=0, dly=1, wopf=1):
    k = Kern(name)
    import common
    def stamp(): common.stamp(k)
    stamp()
    vmq = []
    def vm(text, tag):
        k(text); vmq.append(tag)
    def wait_stage(st):
        last = max(i for i, t in enumerate(vmq) if t == ('d', st))
        n = len(vmq) - 1 - last
        return n
    def dma_items(st):
        items = []
        if st >= 44:
            part, half = divmod(st-44, 2)
            for j in range(7):
                it = []
                if st == 44 and j == 0:
                    it += [(x, None) for x in (f"v_lshrrev_b32 v{VD}, 3, v{VL}", f"v_mul_u32_u24 v{VD}, 3584, v{VD}", f"v_bfe_u32 v{VD+1}, v{VL}, 4, 1",
                           f"v_lshlrev_b32 v{VD+1}, 2, v{VD+1}", f"v_and_b32 v{VD+2}, 7, v{VL}", f"v_xor_b32 v{VD+1}, v{VD+1}, v{VD+2}",
                           f"v_lshl_add_u32 v{VD}, v{VD+1}, 4, v{VD}", f"s_mov_b32 s{SK}, s96", f"s_mov_b32 s{SK+1}, s97", f"s_mov_b32 s{SK+2}, {448*3584}",
                           f"s_lshr_b32 s{sM4}, s{sM4}, 2")]
                it += [(f"s_add_u32 m0, s{sM4}, {slot(st)+4096*j}", None), (f"s_add_u32 s{sOF}, s53, {(half*28+4*j)*8*3584+(1792 if part == 0 else 0)}", None),
                       (f"buffer_load_dwordx4 v{VD}, s[{SK}:{SK+3}], s{sOF} offen lds", ('d', st))]
                items.append(it)
            return items
        for grp in range(2):
            if st < 14:
                m0 = f"s_add_u32 m0, s{sM8}, {slot(st)+grp*4096}"
                so = f"s_add_u32 s{sOF}, s{sOQ}, {(32*st+16*grp)*(1024 if exp == 'lin' else 8192)}"; R = SQ; vs = [VD, VD+1, VD+2, VD+3]
            elif st < 30:
                s_ = (st-14) % 8
                m0 = f"s_add_u32 m0, s{sM4}, {slot(st)+grp*16384}"
                so = f"s_add_u32 s{sOF}, s{sOK}, {s_*32768+grp*16384}"
                if st < 22: R = SK; vs = [VD, VD+1, VD+2, VD+3]
                else: R = SV; vs = [VD, VD+1, VD, VD+1]
            else:
                j, q = divmod(st-30, 2)
                m0 = f"s_add_u32 m0, s{sM8}, {slot(st)+grp*4096}"
                so = f"s_add_u32 s{sOF}, s{sOW}, {(128*q+32*grp)*896+j*128}"; R = SW; vs = [VD, VD+1, VD+2, VD+3]
            for ii in range(4):
                it = []
                if ii == 0:
                    if grp == 0:
                        if st == 14:
                            it += [(f"v_accvgpr_read_b32 v{VD}, {r(AS)}", None)] + [(f"v_xor_b32 v{VD+x}, {32*x}, v{VD}", None) for x in (1, 2, 3)]
                        if st == 22:
                            it += [(f"v_accvgpr_read_b32 v{VD}, {r(AS+1)}", None), (f"v_xor_b32 v{VD+1}, 128, v{VD}", None)]
                        if st == 30:
                            it += [(f"v_accvgpr_read_b32 v{VD}, {r(AS+2)}", None)] + [(f"v_add_u32 v{VD+x}, {6144*x}, v{VD}", None) for x in (1, 2, 3)]
                    it += [(m0, None), (so, None)]
                it.append((f"buffer_load_dwordx4 v{vs[ii]}, s[{R}:{R+3}], s{sOF} offen offset:{ii*1024} lds", ('d', st)))
                items.append(it)
        return items
    def emit_item(it):
        for t, tag in it:
            if tag: vm(t, tag)
            else: k(t)

    k(f"""
    s_load_dwordx4 s[28:31], s[0:1], 8
    s_load_dwordx4 s[32:35], s[0:1], 24
    s_load_dwordx2 s[6:7], s[0:1], 112
    s_load_dwordx4 s[96:99], s[0:1], 48
    s_load_dwordx2 s[100:101], s[0:1], 72
    s_load_dwordx2 s[54:55], s[0:1], 0
    s_load_dwordx4 s[80:83], s[0:1], 80
    s_load_dwordx2 s[84:85], s[0:1], 104
    v_and_b32 v{VL}, 63, v0
    v_lshrrev_b32 v22, 6, v0
    s_cmp_ge_u32 s2, 256
    s_cbranch_scc1 {name}_end
    v_readfirstlane_b32 s{sW}, v22
    s_getpc_b64 s[92:93]
    {name}_pc:
    s_mov_b32 s94, {name}_end-{name}_pc
    s_mov_b32 s95, 0x20000
    s_lshr_b32 s5, s2, 3
    s_lshl_b32 s5, s5, 12
    v_lshlrev_b32 v23, 4, v0
    buffer_load_dwordx4 a[240:243], v23, s[92:95], s5 offen ; nowait
    XMAP
    s_mov_b32 s{sMASK}, 0xffff0000
    s_lshl_b32 s{sM8}, s{sW}, 13
    s_lshl_b32 s{sM4}, s{sW}, 12
    s_lshl_b32 s5, s3, 10
    s_add_u32 s{sOQ}, s5, s{sM8}
    s_lshl_b32 s5, s3, 20
    s_add_u32 s{sOK}, s5, {1536*512}
    s_lshl_b32 s50, s4, 13
    s_add_u32 s50, s50, s{sOK}
    s_add_u32 s{sOK}, s{sOK}, s{sM4}
    s_lshr_b32 s36, s{sW}, 1
    s_and_b32 s37, s{sW}, 1
    s_lshl_b32 s5, s3, 9
    s_lshl_b32 s38, s36, 8
    s_add_u32 s5, s5, s38
    s_lshl_b32 s38, s37, 6
    s_add_u32 s5, s5, s38
    s_mul_i32 s{sOW}, s5, 896
    s_mul_i32 s51, s3, {512*896}
    s_mul_i32 s5, s4, 14336
    s_add_u32 s51, s51, s5
    s_mul_i32 s{sOP}, s3, {XB}
    s_lshl_b32 s5, s4, 1
    s_add_u32 s5, s5, s37
    s_mul_i32 s5, s5, 28672
    s_add_u32 s{sOP}, s{sOP}, s5
    s_lshl_b32 s5, s36, 11
    s_add_u32 s{sOP}, s{sOP}, s5
    s_add_u32 s{sOP}, s{sOP}, {WS_PART}
    s_lshl_b32 s5, s4, 2
    s_add_u32 s5, s5, s{sW}
    s_mul_i32 s52, s5, {16*896}
    s_lshr_b32 s38, s2, 3
    s_mul_i32 s39, s38, 9363
    s_lshr_b32 s39, s39, 16
    s_mul_i32 s5, s39, 7
    s_sub_u32 s38, s38, s5
    s_and_b32 s5, s2, 1
    s_mul_i32 s5, s5, 7
    s_add_u32 s38, s38, s5
    s_and_b32 s5, s2, 6
    s_lshl_b32 s5, s5, 1
    s_add_u32 s39, s39, s5
    s_mul_i32 s53, s{sW}, {8*3584}
    s_lshl_b32 s5, s38, 7
    s_add_u32 s53, s53, s5
    v_lshlrev_b32 v23, 4, v{VL}
    s_lshl_b32 s5, s{sW}, 6
    v_xor_b32 v{VD}, s5, v23
    v_add_u32 v{VD+1}, {31744}, v{VD}
    v_add_u32 v{VD+2}, {2*31744}, v{VD}
    v_add_u32 v{VD+3}, {3*31744}, v{VD}
    s_waitcnt lgkmcnt(0)
    """.replace("XMAP", {1: "s_and_b32 s3, s2, 7\ns_lshr_b32 s4, s2, 3",
         2: "s_and_b32 s3, s2, 3\ns_lshl_b32 s3, s3, 1\ns_bfe_u32 s4, s2, 0x10003\ns_add_u32 s3, s3, s4\ns_bfe_u32 s4, s2, 0x10002\ns_lshl_b32 s4, s4, 4\ns_lshr_b32 s5, s2, 4\ns_add_u32 s4, s4, s5",
         4: "s_and_b32 s3, s2, 1\ns_lshl_b32 s3, s3, 2\ns_bfe_u32 s4, s2, 0x20003\ns_add_u32 s3, s3, s4\ns_bfe_u32 s4, s2, 0x20001\ns_lshl_b32 s4, s4, 3\ns_lshr_b32 s5, s2, 5\ns_add_u32 s4, s4, s5"}[xmap]))
    if exp == 'lin':
        k(f"s_mul_i32 s{sOQ}, s3, 458752\ns_lshl_b32 s5, s{sW}, 10\ns_add_u32 s{sOQ}, s{sOQ}, s5")
        for x in (1, 2, 3): k(f"v_add_u32 v{VD+x}, {x*3072}, v{VD}")
    XP = RB; WM = 224; SCR = 3*SLOT + 64*912
    k('s_mov_b32 s86, s52')
    if touch:
        srd(k, 92, 84, 85, 256)
        k("v_mov_b32 v10, 248\nbuffer_load_dword a244, v10, s[92:95], 0 offen sc1 ; nowait")
    srd(k, 92, 82, 83, 448*5376); srd(k, 88, 80, 81, 896)
    k(f"""
    s_sub_u32 s5, s2, 56
    s_cmp_lt_u32 s2, 56
    s_cselect_b32 s5, s2, s5
    s_movk_i32 s50, 2341
    s_cselect_b32 s50, 4682, s50
    s_cselect_b32 s52, 14, 28
    s_mul_i32 s51, s5, s50
    s_lshr_b32 s51, s51, 16
    s_mul_i32 s52, s52, s51
    s_sub_u32 s50, s5, s52
    s_cmp_lt_u32 s2, 56
    s_cselect_b32 s5, 0, 14
    s_add_u32 s50, s50, s5
    s_cmp_lt_u32 s2, 168
    s_cselect_b32 s94, s94, 0
    s_cselect_b32 s90, s90, 0
    s_mul_i32 s5, s51, {112*5376}
    s_lshl_b32 s52, s50, 7
    s_add_u32 s5, s5, s52
    v_lshrrev_b32 v10, 3, v0
    v_mul_u32_u24 v11, 5376, v10
    v_and_b32 v12, 7, v0
    v_lshl_add_u32 v11, v12, 4, v11
    v_mov_b32 v13, 0x7ffffff0
    v_cmp_gt_u32 vcc, 16, v10
    v_cndmask_b32 v14, v13, v11, vcc
    v_lshlrev_b32 v15, 2, v0
    s_mul_i32 s52, s51, 224
    """)
    vm(f"buffer_load_dword v240, v15, s[88:91], s52 offen", 'l')
    for i in range(4):
        vm(f"buffer_load_dwordx4 v[{WM+4*i}:{WM+4*i+3}], v{11 if i < 3 else 14}, s[92:95], s5 offen", 'l')
        if i < 3: k(f"s_add_u32 s5, s5, {32*5376}")
    srd(k, SS, 6, 7, WS_U+2048*1792)
    srd(k, SQ, 32, 33, 448*8192)
    srd(k, SK, 28, 29, 8 << 20)
    srd(k, SV, 30, 31, 8 << 20)
    srd(k, SW, 34, 35, 4096*896)
    k(f"""
    s_cmp_lt_u32 s2, 56
    s_cselect_b32 s5, s{sW}, 0
    s_cmp_eq_u32 s5, 1
    s_cselect_b64 vcc, -1, 0
    v_cndmask_b32 v16, v13, v23, vcc
    s_cmp_lt_u32 s2, 56
    s_cselect_b32 s5, 0, s{sW}
    s_cmp_eq_u32 s5, 0
    s_cselect_b64 vcc, -1, 0
    v_cndmask_b32 v19, v23, v13, vcc
    v_mov_b32 v244, -1
    v_mov_b32 v245, -1
    v_mov_b32 v246, -1
    v_mov_b32 v247, -1
    s_mul_i32 s5, s2, 4400
    s_add_u32 s5, s5, {WS_ST}
    """)
    for o in (0, 1024, 2048, 3072, 3376): vm(f"buffer_store_dwordx4 v[244:247], v16, s[{SS}:{SS+3}], s5 offen offset:{o} sc1", 's')
    srd(k, 88, 54, 55, XB)
    k("s_mov_b32 exec_hi, 0x00ffffff")
    for i in range(16):
        if i and i % 4 == 0: k(f"s_add_u32 s86, s86, {4*896}")
        vm(f"buffer_load_dwordx4 v[{XP+4*i}:{XP+4*i+3}], v23, s[88:91], s86 offen offset:{(i%4)*896}", 'l')
    k("s_mov_b32 exec_hi, -1")
    k(f"""
    v_lshrrev_b32 v24, 5, v{VL}
    v_and_b32 v25, 31, v{VL}
    v_bfe_u32 v26, v{VL}, 2, 2
    v_bfe_u32 v27, v{VL}, 4, 1
    v_and_b32 v28, 3, v{VL}
    v_lshlrev_b32 v29, 5, v27
    v_lshl_add_u32 v30, v28, 3, v29
    v_and_b32 v31, 1, v28
    v_lshlrev_b32 v31, 1, v31
    v_lshrrev_b32 v28, 1, v28
    v_or_b32 v28, v28, v31
    v_lshl_add_u32 v29, v28, 3, v29
    """)
    k(f"""
    v_mul_u32_u24 v{RQ}, {8192+64}, v26
    v_lshl_add_u32 v{RQ}, v24, 11, v{RQ}
    v_add_u32 v{RQ}, v{RQ}, v29
    s_lshl_b32 s5, s36, 9
    v_add_u32 v{RQ}, s5, v{RQ}
    v_and_b32 v31, 15, v25
    v_xor_b32 v31, v31, v24
    v_lshlrev_b32 v31, 4, v31
    v_lshl_add_u32 v{RK}, v25, 9, v31
    v_mul_u32_u24 v{RV}, {512+64}, v26
    v_lshl_add_u32 v{RV}, v24, 11, v{RV}
    v_add_u32 v{RV}, v{RV}, v30
    v_lshlrev_b32 v{RW}, 7, v26
    v_lshl_add_u32 v{RW}, v24, 9, v{RW}
    v_add_u32 v{RW}, v{RW}, v29
    v_lshrrev_b32 v31, 1, v26
    v_xor_b32 v31, s36, v31
    v_lshl_add_u32 v{RW}, v31, 6, v{RW}
    s_lshl_b32 s5, s36, 14
    v_add_u32 v{RW}, s5, v{RW}
    v_lshlrev_b32 v{VST}, 4, v25
    v_lshl_add_u32 v{VST}, v24, 9, v{VST}
    s_lshl_b32 s5, s37, 3
    v_xor_b32 v31, s5, v25
    v_xor_b32 v31, v31, v24
    v_lshlrev_b32 v31, 4, v31
    v_lshl_add_u32 v31, v24, 9, v31
    v_accvgpr_write_b32 {r(AS)}, v31
    v_lshlrev_b32 v31, 2, v24
    v_xor_b32 v31, v31, v25
    v_lshlrev_b32 v31, 4, v31
    v_lshl_add_u32 v31, v24, 9, v31
    v_accvgpr_write_b32 {r(AS+1)}, v31
    v_lshrrev_b32 v31, 3, v{VL}
    v_mul_u32_u24 v31, 896, v31
    v_lshlrev_b32 v27, 2, v27
    v_and_b32 v28, 7, v{VL}
    v_xor_b32 v28, v28, v27
    v_lshl_add_u32 v31, v28, 4, v31
    v_accvgpr_write_b32 {r(AS+2)}, v31
    s_mul_i32 s5, s{sW}, {16*912}
    s_add_u32 s5, s5, {3*SLOT}
    v_add_u32 v23, s5, v23
    s_mul_i32 s5, s37, {32*912}
    s_add_u32 s5, s5, {3*SLOT}
    v_mul_u32_u24 v22, 912, v25
    v_lshl_add_u32 v22, v24, 4, v22
    v_add_u32 v22, s5, v22
    s_mov_b32 s{sC}, {hx(LOG2E/16)}
    """)
    def pk(op, d, *src, mod=""):
        return f"v_pk_{op}_f32 v[{d}:{d+1}], " + ", ".join(x if isinstance(x, str) else f"v[{x}:{x+1}]" for x in src) + mod
    NEG = " op_sel_hi:[1,0] neg_lo:[0,1] neg_hi:[0,1]"
    def tred(S):
        for j in range(0, 8, 2): k(f"v_permlane32_swap_b32 v{S+j}, v{S+j+1}")
        for j in range(0, 8, 2): k(f"v_add_f32 v{S+j}, v{S+j}, v{S+j+1}")
        for j in (0, 4): k(f"v_permlane16_swap_b32 v{S+j}, v{S+j+2}")
        for j in (0, 4): k(f"v_add_f32 v{S+j}, v{S+j}, v{S+j+2}")
        for pat in ("quad_perm:[1,0,3,2]", "quad_perm:[2,3,0,1]", "row_half_mirror", "row_mirror"):
            for j in (0, 4): k(f"v_add_f32_dpp v{S+j}, v{S+j}, v{S+j} {pat} {DP}")
    LN = (0, 32, 16, 48); pfq = []
    def lnhalf(hf):
        S = 10; Q = 24
        for i in range(8):
            x = RA+8*(8*hf+i)
            unpack(k, x, XP+4*(8*hf+i), 4, sMASK)
            if pfq and pfm[0]: k(pfq.pop(0))
            k(pk('add', 20, x, x+2)); k(pk('add', 252, x+4, x+6)); k(pk('add', 20, 20, 252)); k(f"v_add_f32 v{S+i}, v20, v21")
            k(f"v_cndmask_b32 v{S+i}, 0, v{S+i}, vcc")
        tred(S)
        for j in (0, 4): k(f"v_mul_f32 v{S+j}, {hx(1/448)}, v{S+j}")
        k(f"v_readlane_b32 s88, v{S}, 0")
        for i in range(8):
            x = RA+8*(8*hf+i); sp = 88+2*(i & 1)
            if i < 7: k(f"v_readlane_b32 s{88+2*((i+1) & 1)}, v{S+4*((i+1) >> 2)}, {LN[(i+1) & 3]}")
            for j in range(4):
                k(pk('add', 252+2*(j & 1), x+2*j, f"s[{sp}:{sp+1}]", mod=NEG))
                k(pk('mul', 20, 252, 252) if j == 0 else pk('fma', 20, 252+2*(j & 1), 252+2*(j & 1), 20))
            k(f"v_add_f32 v{Q+i}, v20, v21\nv_cndmask_b32 v{Q+i}, 0, v{Q+i}, vcc")
        tred(Q)
        for j in (0, 4):
            q = Q+j; m = S+j
            k(f"v_mul_f32 v{q}, {hx(1/448)}, v{q}")
            k("\n".join([f"v_cvt_pk_bf16_f32 v{q}, 0, v{q}", f"v_cvt_pk_bf16_f32 v{m}, 0, v{m}", f"v_add_f32 v{q}, {hx(1e-5)}, v{q}",
                f"v_cvt_pk_bf16_f32 v{q}, 0, v{q}", f"v_sqrt_f32 v{q}, v{q}", f"v_cvt_pk_bf16_f32 v{q}, 0, v{q}", f"v_rcp_f32 v{q}, v{q}"]))
        k(f"v_readlane_b32 s88, v{S}, 0\nv_readlane_b32 s89, v{Q}, 0")
        for i in range(8):
            x = RA+8*(8*hf+i); sp = 88+2*(i & 1); sn = 88+2*((i+1) & 1)
            if i < 7: k(f"v_readlane_b32 s{sn}, v{S+4*((i+1) >> 2)}, {LN[(i+1) & 3]}\nv_readlane_b32 s{sn+1}, v{Q+4*((i+1) >> 2)}, {LN[(i+1) & 3]}")
            if pfq and pfm[1]: k(pfq.pop(0))
            for j in range(4): k(pk('add', x+2*j, x+2*j, f"s[{sp}:{sp+1}]", mod=NEG))
            for j in range(8): rnd(k, x+j, x+j)
            for j in range(4): k(pk('mul', x+2*j, x+2*j, f"s[{sp}:{sp+1}]", mod=" op_sel:[0,1] op_sel_hi:[1,1]"))
            for j in range(8): rnd(k, x+j, x+j)
    L32 = struct.unpack('<f', struct.pack('<f', LOG2E))[0]
    srd(k, 92, 84, 85, 256)
    k(f"""
    s_cmp_ge_u32 s2, 168
    s_cbranch_scc1 {name}_nog
    s_mov_b32 s88, {hx(-LOG2E)}
    s_mov_b32 s89, {hx(-(LOG2E-L32))}
    v_and_b32 v241, s{sMASK}, v240
    v_lshlrev_b32 v240, 16, v240
    """)
    def silu(c, a, b, d, e):
        return f"""v_mul_f32 v{a}, s88, v{c}
        v_fma_f32 v{b}, s88, v{c}, -v{a}
        v_fmac_f32 v{b}, s89, v{c}
        v_min_f32 v{a}, {hx(126.0)}, v{a}
        v_exp_f32 v{a}, v{a}
        v_mul_f32 v{b}, {hx(0.6931471805599453)}, v{b}
        v_fmac_f32 v{a}, v{a}, v{b}
        v_add_f32 v{a}, 1.0, v{a}
        v_rcp_f32 v{b}, v{a}
        v_mul_f32 v{d}, v{c}, v{b}
        v_fma_f32 v{e}, -v{d}, v{a}, v{c}
        v_fma_f32 v{c}, v{e}, v{b}, v{d}
        v_cvt_pk_bf16_f32 v{c}, 0, v{c}""".split("\n")
    for x, y in zip(silu(240, 10, 11, 12, 13), silu(241, 14, 15, 16, 17)): k(x); k(y)
    k(f"""v_lshlrev_b32 v10, 3, v0
    v_add_u32 v10, {SCR}, v10
    ds_write_b64 v10, v[240:241]
    v_lshrrev_b32 v11, 3, v0
    v_lshlrev_b32 v11, 2, v11
    v_add_u32 v11, {SCR}, v11
    s_waitcnt lgkmcnt(0)
    s_barrier""")
    stamp()
    for i in range(4): k(f"ds_read_b32 v{240+i}, v11 offset:{128*i}")
    A = 244
    for i in range(4):
        unpack(k, 24, WM+4*i, 4, sMASK)
        for j in range(8): k(f"v_mul_f32 v{A+j}, v{24+j}, v{240+i}" if i == 0 else f"v_fmac_f32 v{A+j}, v{24+j}, v{240+i}")
    for j in range(8): k(f"v_add_f32_dpp v{A+j}, v{A+j}, v{A+j} row_ror:8 {DP}")
    for sw in ("v_permlane16_swap_b32", "v_permlane32_swap_b32"):
        for j in range(8): k(f"v_mov_b32 v{24+j}, v{A+j}")
        for j in range(8): k(f"{sw} v{A+j}, v{24+j}")
        for j in range(8): k(f"v_add_f32 v{A+j}, v{A+j}, v{24+j}")
    k(f"""
    v_and_b32 v10, 7, v0
    v_lshlrev_b32 v10, 5, v10
    s_lshl_b32 s5, s{sW}, 8
    s_add_u32 s5, s5, {SCR+2048}
    v_add_u32 v10, s5, v10
    ds_write_b128 v10, v[{A}:{A+3}]
    ds_write_b128 v10, v[{A+4}:{A+7}] offset:16
    v_lshlrev_b32 v11, 2, v{VL}
    v_add_u32 v12, {SCR+2048}, v11
    s_waitcnt vmcnt(16) lgkmcnt(0)
    s_barrier
    s_cmp_lg_u32 s{sW}, 0
    s_cbranch_scc1 {name}_nog
    ds_read_b32 v13, v12
    ds_read_b32 v14, v12 offset:256
    ds_read_b32 v15, v12 offset:512
    ds_read_b32 v16, v12 offset:768
    s_mul_i32 s5, s51, 10752
    s_lshl_b32 s52, s50, 8
    s_add_u32 s5, s5, s52
    s_add_u32 s5, s5, {WS_XN}
    s_lshl_b32 s52, s50, 2
    s_add_u32 s52, s52, s51
    s_cmp_lt_u32 s2, 56
    s_cselect_b32 s51, 0, 72
    s_add_u32 s52, s52, s51
    v_add_f32 v13, v13, v14
    v_add_f32 v15, v15, v16
    v_add_f32 v13, v13, v15
    buffer_store_dword v13, v11, s[{SS}:{SS+3}], s5 offen sc1
    v_mov_b32 v14, 0
    v_mov_b32 v15, 1
    s_waitcnt vmcnt(0)
    buffer_store_byte v15, v14, s[92:95], s52 offen sc1
    s_branch {name}_join
    {name}_nog:
    s_waitcnt vmcnt(0)
    {name}_join:
    """)
    stamp()
    k(f"""
    s_mul_i32 s28, s2, 3
    s_add_u32 s28, s28, s{sW}
    s_sub_u32 s28, s28, 169
    s_max_i32 s28, s28, 0
    s_mul_i32 s29, s28, 6128
    s_mul_i32 s30, s28, 874
    s_lshr_b32 s30, s30, 16
    s_mul_i32 s31, s30, 75
    s_sub_u32 s31, s28, s31
    s_mul_i32 s31, s31, 3504
    s_lshl_b32 s30, s30, 20
    s_add_u32 s30, s30, s31
    s_add_u32 s30, s30, {1536*512}
    s_add_u32 s31, s29, 4096
    s_cmp_eq_u32 s{sW}, 0
    s_cbranch_scc1 {name}_nd""")
    if dly: k(f"s_cmp_lt_u32 s2, 56\ns_cbranch_scc1 {name}_nd")
    for st in range(3):
        for it in dma_items(st): emit_item(it)
    k(f"{name}_nd:\nv_cmp_gt_u32 vcc, 56, v{VL}")
    W6 = ((29, 0), (29, 1024), (29, 2048), (29, 3072), (31, 0), (31, 1008)); K4 = ((30, 0), (30, 1024), (30, 2048), (30, 2480))
    for R, lst in ((SQ, W6), (SK, K4), (SV, K4), (SW, W6))[:4-wopf]:
        for so, o in lst: pfq.append(f"buffer_load_dwordx4 a[240:243], v19, s[{R}:{R+3}], s{so} offen offset:{o} ; nowait")
    lnhalf(0)
    k(f"s_cmp_lt_u32 s2, 56\ns_cselect_b32 s5, s{sW}, 0\ns_cmp_eq_u32 s5, 0\ns_cbranch_scc1 {name}_nd2\ns_waitcnt vmcnt(16)")
    for st in range(3):
        for it in dma_items(st): emit_item(it)
    k(f"{name}_nd2:")
    lnhalf(1)
    assert not pfq
    stamp()
    L = k.lab()
    k(f"""
    s_mov_b32 s28, 0x7ffffff0
    v_lshlrev_b32 v12, 5, v{VL}
    v_add_u32 v12, {SCR+3072}, v12
    s_cmp_lg_u32 s{sW}, 0
    s_cbranch_scc1 {name}_sh
    s_sub_u32 s50, s2, 154
    s_cmp_lt_u32 s50, 42
    s_cselect_b32 s5, s50, 0
    s_cmp_ge_u32 s50, 14
    s_cselect_b32 s50, s5, 0
    v_min_u32 v10, 14, v{VL}
    v_cmp_eq_u32 vcc, 14, v10
    s_add_u32 s5, s50, 18
    s_cmp_lg_u32 s50, 0
    s_cselect_b32 s5, s5, 0
    v_mov_b32 v11, s5
    v_cndmask_b32 v10, v10, v11, vcc
    v_lshlrev_b32 v10, 2, v10
    s_mov_b32 s5, 0
    s_mov_b32 s51, 0x01010101
    {L}:
    buffer_load_dword v11, v10, s[92:95], 0 offen sc1
    s_add_u32 s5, s5, 1
    s_waitcnt vmcnt(0)
    v_cmp_ne_u32 vcc, s51, v11
    s_cbranch_vccz {L}_ok
    {f's_sleep {slp}' if slp else ''}
    s_cmp_lt_u32 s5, 0x20000
    s_cbranch_scc1 {L}
    {L}_ok:
    v_lshlrev_b32 v10, 4, v{VL}
    v_lshlrev_b32 v11, 2, v{VL}
    v_mov_b32 v13, 0x7ffffff0
    v_cmp_gt_u32 vcc, 56, v{VL}
    v_cndmask_b32 v14, v13, v10, vcc
    s_cmp_lg_u32 s50, 0
    s_cselect_b64 vcc, -1, 0
    v_cndmask_b32 v11, v13, v11, vcc
    s_lshl_b32 s51, s50, 8
    s_add_u32 s51, s51, {WS_XN}
    s_mov_b32 s5, {WS_XN}
    """)
    stamp()
    MP = RB
    for q in range(4):
        for c in range(4): k(f"buffer_load_dwordx4 v[{MP+16*q+4*c}:{MP+16*q+4*c+3}], v14, s[{SS}:{SS+3}], s5 offen offset:{896*c}")
        if q < 3: k(f"s_add_u32 s5, s5, 10752")
    for q in range(4):
        k(f"buffer_load_dword v{240+q}, v11, s[{SS}:{SS+3}], s51 offen sc1")
        if q < 3: k(f"s_add_u32 s51, s51, 10752")
    k(f"v_add_u32 v10, {SCR+3072}, v10\ns_mov_b32 exec_hi, 0x00ffffff")
    for j in range(0, 16, 2): k(pk('add', MP+j, MP+j, MP+16+j))
    for j in range(0, 16, 2): k(pk('add', MP+32+j, MP+32+j, MP+48+j)); k(pk('add', MP+j, MP+j, MP+32+j))
    for j in range(16):
        rnd(k, MP+j, MP+j)
        if j >= 8: k(f"v_add_f32 v{MP+j}, 1.0, v{MP+j}"); rnd(k, MP+j, MP+j)
    for c in range(4): k(f"ds_write_b128 v10, v[{MP+4*c}:{MP+4*c+3}] offset:{896*c}")
    k(f"""s_mov_b32 exec_hi, -1
    v_add_f32 v240, v240, v241
    v_add_f32 v242, v242, v243
    v_add_f32 v240, v240, v242
    v_cvt_pk_bf16_f32 v240, v240, v240
    v_lshlrev_b32 v11, 1, v{VL}
    v_cndmask_b32 v11, v13, v11, vcc
    s_cmp_lg_u32 s50, 0
    s_cselect_b32 s28, 252, s28
    s_lshl_b32 s51, s50, 7
    s_waitcnt lgkmcnt(0)
    s_barrier
    buffer_store_short v240, v11, s[{SS}:{SS+3}], s51 offen sc1""")
    vmq.clear(); vmq.append('fs')
    for st in range(3):
        for it in dma_items(st): emit_item(it)
    k(f"s_branch {name}_md\n{name}_sh:\ns_barrier\n{name}_md:")
    SA = WM; C1 = WM+8
    for j in range(2): k(f"ds_read_b128 v[{SA+4*j}:{SA+4*j+3}], v12 offset:{16*j}\nds_read_b128 v[{C1+4*j}:{C1+4*j+3}], v12 offset:{1792+16*j}")
    k("s_mov_b32 exec_hi, 0x00ffffff")
    for i in range(16):
        x = RA+8*i
        for j in range(4): k(pk('mul', x+2*j, x+2*j, C1+2*j))
        for j in range(8): rnd(k, x+j, x+j)
        for j in range(4): k(pk('add', x+2*j, x+2*j, SA+2*j))
        for j in range(4): k(f"v_cvt_pk_bf16_f32 v{x+j}, v{x+2*j}, v{x+2*j+1}")
        k(f"ds_write_b128 v23, v[{x}:{x+3}] offset:{i*912}")
    k("s_mov_b32 exec_hi, -1")
    k(f"s_waitcnt vmcnt({wait_stage(0)}) lgkmcnt(0)\ns_barrier")
    stamp()

    mf = []; rd = []; stage_first = {}
    def ring(n): return AR + 4*(n % NRING)
    def add(st, D, B, C, reads):
        n = len(mf)
        stage_first.setdefault(st, n)
        A = ring(n)
        mf.append(f"v_mfma_f32_32x32x16_bf16 {r(D,16)}, {r(A,4)}, {r(B,4)}, {r(D,16) if C else 0}")
        rd.append([x.replace('@0', r(A, 2)).replace('@1', r(A+2, 2)).replace('@', r(A, 4)) for x in reads])
    for st in range(14):
        for u in range(2):
            for dt in range(8):
                pre = [f"v_xor_b32 v{XA+dt}, {dt*64 | slot(st)}, v{RQ}"] if (u == 0 and dt < 4) else []
                add(st, RA+16*dt, AH+4*(2*st+u), st+u > 0, pre + [
                    f"ds_read_b64_tr_b16 @{e}, v{XA+(dt&3)} offset:{(4*u+e)*1024+(dt>>2)*256}" for e in range(2)])
    S0 = len(mf)
    for s_ in range(8):
        st = 14+s_
        for kt in range(2):
            for t in range(16):
                pre = [f"v_xor_b32 v{XA+t}, {32*t | slot(st)}, v{RK}"] if (kt == 0 and t < 8) else []
                add(st, RC+16*kt, RB+4*t, t > 0, pre + [f"ds_read_b128 @, v{XA+(t&7)} offset:{256*(t>>3)+kt*16384}"])
    P0 = len(mf)
    OT = [RB, RB+16, RB+32, RB+48, AO, AO+16, RC, RC+16]
    for s_ in range(8):
        st = 22+s_
        for u in range(4):
            for dt in range(8):
                pre = [f"v_xor_b32 v{XA+dt}, {dt*64 | slot(st)}, v{RV}"] if (u == 0 and dt < 4) else []
                add(st, OT[dt], RA+4*(4*s_+u), s_+u > 0, pre + [
                    f"ds_read_b64_tr_b16 @{e}, v{XA+(dt&3)} offset:{u*8192+e*4096+(dt>>2)*256}" for e in range(2)])
    W0 = len(mf)
    OWN, OTH = RA, RA+64
    WA = [RB, RB+16]; WT = RB+32
    for j in range(7):
        order = [(0, 0), (1, 0), (0, 1), (1, 1)] if j == 0 else [(0, 0), (0, 1), (1, 0), (1, 1)]
        for oi, (q, oth) in enumerate(order):
            st = 30+2*j+q
            xa = XA + (oi & 1)
            for u in range(8):
                pre = [f"v_xor_b32 v{xa}, {oth*16384 | slot(st)}, v{RW}"] if u == 0 else []
                add(st, WA[j & 1], (OTH if oth else OWN)+4*(8*q+u), oi+u > 0, pre + [
                    f"ds_read_b64_tr_b16 @{e}, v{xa} offset:{u*2048+e*1024}" for e in range(2)])
    N = len(mf)
    if exp == 'halfrd':
        for n in range(N):
            if (n < S0 or n >= W0) and n % 2: rd[n] = [x for x in rd[n] if not x.startswith('ds_')]
    if exp == 'pair':
        for n in range(0, N, 2):
            if (n < S0 or n >= W0): rd[n] = rd[n] + rd[n+1]; rd[n+1] = []
    fill = [[] for _ in range(N+1)]
    pre_mf = [[] for _ in range(N+1)]
    bar = {}
    for st in range(1, 44):
        g = stage_first[st] - NR
        iss = [st+3] if st+3 < (47 if fused else 44) else []
        if st == 1: iss = [3, 4]
        if st in (30, 31): iss = []
        bar[g] = (st, iss)
    fill[70] += ["@FIN"]
    fill[W0+20] += ["v_mov_b32 v30, 252", "buffer_load_dword v30, v30, s[92:95], 0 offen sc1"]
    fill[W0+39] += ["@CHK"]
    if mall:
        pl = [(98, 2048*4096, 8192, 8), (96, 448*3584, 1568, 2), (100, 896*896, 784, 1)]
        if wopf == 1: pl = [(SW, 4096*896, 3584, 4)] + pl
        g = S0+20
        for p, n, per, cnt in pl:
            fill[g-1] += [f"s_mov_b32 s88, s{p}", f"s_mov_b32 s89, s{p+1}", f"s_mov_b32 s90, {n}", "s_mov_b32 s91, 0x20000",
                          f"s_lshl_b32 s5, s2, 2", f"s_add_u32 s5, s5, s{sW}", f"s_mul_i32 s52, s5, {per}", f"v_lshlrev_b32 v27, 4, v{VL}"]
            for c in range(cnt):
                fill[g] += [f"buffer_load_dwordx4 v[28:31], v27, s[88:91], s52 offen ; nowait", "s_add_u32 s52, s52, 1024"]
                g += mall
    if fused:
        g = W0+40
        fill[g] += [f"s_mov_b32 s{SQ}, s54", f"s_mov_b32 s{SQ+1}, s55", f"s_mov_b32 s{SQ+2}, {XB}", f"s_mul_i32 s5, s{sW}, 14",
                    f"v_lshrrev_b32 v26, 3, v{VL}", f"v_add_u32 v26, s5, v26"]
        fill[g+1] += [f"v_and_b32 v27, 7, v{VL}", f"v_cmp_gt_u32 vcc, 56, v{VL}", f"v_mov_b32 v31, 0x7ffffff0", f"v_lshlrev_b32 v28, 9, v26", f"v_lshl_add_u32 v28, v27, 4, v28"]
        fill[g+2] += [f"v_lshlrev_b32 v26, 4, v26", f"v_mul_u32_u24 v27, 896, v27", f"v_add_u32 v27, v27, v26", f"v_cndmask_b32 v26, v31, v26, vcc",
                      f"v_cndmask_b32 v27, v31, v27, vcc", f"v_cndmask_b32 v28, v31, v28, vcc"]
        fill[g+3] += [f"s_lshl_b32 s5, s4, 3", f"s_add_u32 s52, s5, s3", f"s_mul_i32 s5, s52, {8*896}"]
        for i in range(2):
            fill[g+4+i] += [f"buffer_load_dwordx4 v[{224+4*i}:{227+4*i}], v27, s[{SQ}:{SQ+3}], s5 offen offset:{112*i}"]
            for m in range(3):
                fill[g+6+3*i+m] += [f"buffer_load_dwordx4 v[{232+8*m+4*i}:{235+8*m+4*i}], v26, s[{SS}:{SS+3}], 0 offen offset:{WS_MOD+(2+m)*896+112*i}"]
    hreads = [f"ds_read_b128 {r(AH+4*t,4)}, v22 offset:{32*t}" for t in range(28)]
    for g in range(9): fill[g] += hreads[2+3*g:5+3*g]
    for t in range(16):
        dt, jj = t >> 1, t & 1
        fill[S0-5+t] += [f"v_cvt_pk_bf16_f32 v{RB+4*t+i}, v{RA+16*dt+8*jj+2*i}, v{RA+16*dt+8*jj+2*i+1}" for i in range(4)]
    def stile(kt):
        c = RC+16*(kt & 1)
        mx = [f"v_max_f32 v{VM}, v{c}, v{c+1}" if (kt == 0 and i == 0) else f"v_max3_f32 v{VM}, v{VM}, v{c+2*i}, v{c+2*i+1}" for i in range(8)]
        pk = [f"v_cvt_pk_bf16_f32 v{RA+8*kt+i}, v{c+2*i}, v{c+2*i+1}" for i in range(8)]
        return mx, pk
    for kt in range(15):
        mx, pk = stile(kt)
        g0 = S0+16*(kt+1)+3
        for i in range(8): fill[g0+i] += [mx[i], pk[i]]
    def expk(kap):
        o = []
        for i in range(4):
            p = RA+4*kap+i; a_, b_ = T0+2*(i & 1), T0+2*(i & 1)+1
            first = kap == 0 and i == 0
            o.append([f"v_lshlrev_b32 v{a_}, 16, v{p}", f"v_and_b32 v{b_}, s{sMASK}, v{p}",
                      f"v_fma_f32 v{a_}, v{a_}, s{sC}, v{VM}", f"v_fma_f32 v{b_}, v{b_}, s{sC}, v{VM}",
                      f"v_exp_f32 v{a_}, v{a_}", f"v_exp_f32 v{b_}, v{b_}",
                      f"v_add_f32 v{VL0}, {'0' if first else f'v{VL0}'}, v{a_}", f"v_add_f32 v{VL1}, {'0' if first else f'v{VL1}'}, v{b_}",
                      f"v_cvt_pk_bf16_f32 v{p}, v{a_}, v{b_}"])
        return o
    mx, pk = stile(15)
    pre_mf[P0] += mx + [f"v_mov_b32 v{T0}, v{VM}"] + pk[:2] + [f"v_permlane32_swap_b32 v{VM}, v{T0}", f"v_max_f32 v{VM}, v{VM}, v{T0}",
                   f"v_cvt_pk_bf16_f32 v{VM}, 0, v{VM}", f"v_mul_f32 v{VM}, s{sC}, v{VM}", f"v_sub_f32 v{VM}, 0, v{VM}"]
    for x in expk(0): pre_mf[P0] += x
    pre_mf[P0] += pk[2:]
    for kap in range(1, 32):
        for i, x in enumerate(expk(kap)):
            g = P0+8*(kap-1)+2*i
            fill[g] += x[:5]; fill[g+1] += x[5:]
    fill[W0-7] += [f"v_add_f32 v{VL0}, v{VL0}, v{VL1}", f"v_mov_b32 v{VL1}, v{VL0}"]
    fill[W0-6] += [f"v_permlane32_swap_b32 v{VL0}, v{VL1}", f"v_add_f32 v{VL0}, v{VL0}, v{VL1}", f"v_rcp_f32 v{VL0}, v{VL0}",
                   f"s_lshl_b32 s5, s{sW}, 14", f"s_add_u32 s5, s5, {3*SLOT}", f"v_lshlrev_b32 v{XA+4}, 4, v{VL}",
                   f"v_add_u32 v{XA+4}, s5, v{XA+4}", f"s_xor_b32 s5, s{sW}, 2"]
    fill[W0-6] += [f"s_lshl_b32 s5, s5, 14", f"s_add_u32 s5, s5, {3*SLOT}", f"v_lshlrev_b32 v{XA+5}, 4, v{VL}", f"v_add_u32 v{XA+5}, s5, v{XA+5}"]
    def norm(dt, pkd):
        o = []; c = OT[dt]
        for b in range(2):
            src = c+8*b
            if c >= 256:
                o += [f"v_accvgpr_read_b32 v{T0+i}, {r(src+i)}" for i in range(8)]; src = T0
            if pkd: o += [f"v_pk_mul_f32 v[{src+2*i}:{src+2*i+1}], v[{src+2*i}:{src+2*i+1}], v[{VL0}:{VL1}] op_sel_hi:[1,0]" for i in range(4)]
            else: o += [f"v_mul_f32 v{src+i}, v{src+i}, v{VL0}" for i in range(8)]
            d = OWN+8*dt+4*b
            o += [f"v_cvt_pk_bf16_f32 v{d+i}, v{src+2*i}, v{src+2*i+1}" for i in range(4)]
            o += [f"ds_write_b128 v{XA+4}, v[{d}:{d+3}] offset:{(2*dt+b)*1024}"]
        return o
    fill[W0-3] += norm(0, False)[:13]
    fill[W0-2] += norm(0, False)[13:]
    fill[W0-1] += norm(1, False)
    pre_mf[W0] += norm(2, True) + norm(3, True)
    seq = norm(4, False) + norm(5, False) + norm(6, False) + norm(7, False)
    per = (len(seq)+7)//8
    for g in range(8): fill[W0+g] += seq[per*g:per*(g+1)]
    X1 = W0+8; X2 = W0+14
    oreads = [f"ds_read_b128 v[{OTH+4*i}:{OTH+4*i+3}], v{XA+5} offset:{i*1024}" for i in range(16)]
    for g in range(4): fill[X1+1+g] += oreads[4*g:4*g+4]
    def wepi(j):
        c = WA[j & 1]; o = []
        for b in range(2):
            t = WT+4*b
            o += [f"v_cvt_pk_bf16_f32 v{t+i}, v{c+8*b+2*i}, v{c+8*b+2*i+1}" for i in range(4)]
            o += [f"buffer_store_dwordx4 v[{t}:{t+3}], v{VST}, s[{SS}:{SS+3}], s{sOP} offen offset:{b*1024} sc1"]
        o += [f"s_add_u32 s{sOP}, s{sOP}, 4096"]
        return o
    for j in range(6):
        e = wepi(j); g = W0+32*(j+1)+3
        fill[g] += e[:2]; fill[g+1] += e[2:5]; fill[g+2] += e[5:7]; fill[g+3] += e[7:]
    def dump(regs, n):
        srd(k, 52, 6, 7, 64 << 20, WS_DBG)
        k(f"s_lshl_b32 s5, s2, 2\ns_add_u32 s5, s5, s{sW}\ns_mul_i32 s5, s5, {n*256}\nv_lshlrev_b32 v{T0}, 2, v{VL}\ns_waitcnt vmcnt(0) lgkmcnt(0)\ns_nop 15")
        for i in range(n):
            k(f"buffer_store_dword v{regs+i}, v{T0}, s[52:55], s5 offen\ns_add_u32 s5, s5, 256")
            if i % 32 == 31: k("s_waitcnt vmcnt(0)")
        k(f"s_waitcnt vmcnt(0)\ns_branch {name}_end")
    k("\n".join(hreads[:2]))
    for n in range(NR): k("\n".join(rd[n]))
    pend = []
    for n in range(N):
        if stop == 'Q' and n == S0+12: dump(RB, 64); break
        if stop == 'S' and n == P0+8: dump(RA, 128); break
        if stop == 'O' and n == W0+16: dump(RA, 128); break
        if n in (((S0, P0, W0) if os.environ.get('K1ST') else (S0, W0,)) if fused else (16, S0, P0, W0-8, W0, W0+32, W0+128)): stamp()
        if pre_mf[n]: k("\n".join(pre_mf[n]))
        k(mf[n])
        if n in bar:
            st, iss = bar[n]
            lg = " lgkmcnt(0)" if st == 30 else (" lgkmcnt(2)" if st == 1 else "")
            assert not any(t == ('d', st) for it in pend for _, t in it)
            if exp in ('nodma', 'nowait'): k(f"s_waitcnt vmcnt(63){lg}\ns_barrier")
            else: k(f"s_waitcnt vmcnt({wait_stage(st)}){lg}\ns_barrier")
            for s_ in iss: pend += dma_items(s_)
        if n == X1: k("s_waitcnt lgkmcnt(0)\ns_barrier")
        if n == X2:
            k("s_waitcnt lgkmcnt(2)\ns_barrier")
            pend += dma_items(33) + dma_items(34)
        if n+NR < N: k("\n".join(rd[n+NR]))
        for t in fill[n]:
            if t == '@FIN':
                k(f"v_mov_b32 v30, s28\nv_mov_b32 v31, 1\ns_mov_b64 exec, 1\ns_waitcnt vmcnt({len(vmq)-1-vmq.index('fs')})")
                vm("buffer_atomic_add v31, v30, s[92:95], 0 offen sc1", 's')
                k("s_mov_b64 exec, -1")
            elif t == '@CHK':
                L = k.lab()
                k(f"""v_cmp_eq_u32 vcc, 28, v30
                s_mov_b32 s5, 0
                s_cbranch_vccnz {L}_ok
                {L}:
                v_mov_b32 v30, 252
                buffer_load_dword v30, v30, s[92:95], 0 offen sc1
                s_add_u32 s5, s5, 1
                s_waitcnt vmcnt(0)
                v_cmp_eq_u32 vcc, 28, v30
                s_cbranch_vccnz {L}_ok
                s_cmp_lt_u32 s5, 0x20000
                s_cbranch_scc1 {L}
                {L}_ok:""")
            elif t.startswith('buffer_store'):
                if exp != 'nost': vm(t, 's')
            elif t.startswith('buffer_load'): vm(t, 'l')
            else: k(t)
        sp = sps[0] if n < S0 else sps[1] if n < P0 else sps[2] if n < W0 else sps[3]
        if len(pend) > 8: sp = 1
        if pend and n % sp == (sp-1 if exp == 'pair' else 0):
            it = pend.pop(0)
            if exp == 'nodma': vmq.extend(t for _, t in it if t)
            else: emit_item(it)
    if fused:
        assert not pend
        k("s_waitcnt lgkmcnt(0)\ns_barrier")
    if not stop:
        for t in wepi(6)[:-1]: k(t)
    if fused:
        k.last_dma = lambda: [k(t) for it in dma_items(47) for t, _ in it]
        return k
    stamp_end(k, 1)
    k(f"{name}_end:")
    return k
```
